```python
import torch

def _softmax(x, axis=-1):
    return torch.softmax(x, dim=axis)
def _gelu(x):
    return torch.nn.functional.gelu(x, approximate="tanh")
def _silu(x):
    return torch.nn.functional.silu(x)
def _sigmoid(x):
    return torch.sigmoid(x)
def _layernorm(x, axis=-1, eps=1e-5):
    m = x.mean(dim=axis, keepdim=True)
    v = x.var(dim=axis, keepdim=True, unbiased=False)
    return (x - m) / torch.sqrt(v + eps)
def _scatter_add(tgt, idx, src, axis=0):
    return tgt.clone().index_add_(axis, idx, src)
def _segment_sum(src, seg, n):
    out = torch.zeros((n,) + src.shape[1:], dtype=src.dtype)
    return out.index_add_(0, seg, src)
def _pad(x, pw):
    flat = tuple(v for pair in reversed(pw) for v in pair)
    return torch.nn.functional.pad(x, flat)

kernel_name = 'standalone__rezero__prompt'

def setup_inputs():

    _w = (lambda a: (lambda t: t.to(torch.bfloat16) if t.is_floating_point() else t)(torch.as_tensor(a)))
    B, S, D = 4, 2048, 448
    return {
        "x": _w((lambda *s: torch.randn(*s, dtype=torch.bfloat16) * 0.05)(B, S, D)),
        "fx": _w((lambda *s: torch.randn(*s, dtype=torch.bfloat16) * 0.4)(B, S, D)),
        "alpha": _w((lambda *s: torch.randn(*s, dtype=torch.bfloat16) * 0.4)(1) * 0.1),
    }

def reference(x, fx, alpha):
    return x + alpha * fx
```

```python
import sys, argparse

HEADER = """; Kernarg layout for this problem (48 bytes, ptrs only, base s[0:1]):
;   offset   0: d_in[0] x  shape=(4, 2048, 448) dtype=bfloat16 strides=(1835008, 896, 2) contiguous=True
;   offset   8: d_in[1] fx  shape=(4, 2048, 448) dtype=bfloat16 strides=(1835008, 896, 2) contiguous=True
;   offset  16: d_in[2] alpha  shape=(1,) dtype=bfloat16 strides=(2,) contiguous=True
;   offset  40: d_ws      268435456 bytes workspace (unspecified values whenever your kernel or launch list starts; a list's later launches find what earlier ones wrote)
; grid=ceil(out_elems/256), lds=0). Harness parses it; keep it on one line.
"""
NBYTES = 0x700000
NAME = "standalone__rezero__prompt_kernel"

def gen(bt=256, u=1, layout="wave", addr="global", ld="", st="", mode="exact",
        order="xf", alpha="sload", vgpr=None, sgpr=None, extra_desc="", setprio=None,
        endwait=False, xcd=0, touch=0, spin=None, prof=0, trace=0):
    wgbytes = bt * 16 * u
    assert NBYTES % wgbytes == 0, (bt, u)
    nwg = NBYTES // wgbytes
    L = []
    a = L.append
    a(HEADER + f"; @launch grid=({nwg},1,1) block=({bt},1,1) lds=0")
    a('.amdgcn_target "amdgcn-amd-amdhsa--gfx950"')
    a(".text")
    a(f".globl {NAME}")
    a(".p2align 8")
    a(f".type {NAME},@function")
    a(f"{NAME}:")
    if trace:
        a("    s_memrealtime s[40:41]")
    a("    s_load_dwordx8 s[4:11], s[0:1], 0      ; x, fx, alpha, out")
    if spin is not None or prof:
        a("    s_memrealtime s[28:29]")
        a("    s_load_dwordx2 s[34:35], s[0:1], 32")
    if trace:
        a("    s_load_dwordx2 s[36:37], s[0:1], 40")
        a(f"    s_mul_i32 s38, s2, {bt//64}")
        a("    v_lshrrev_b32 v3, 6, v0")
        a("    v_add_u32 v3, s38, v3")
        a("    v_lshlrev_b32 v3, 5, v3")
        a("    s_getreg_b32 s39, hwreg(HW_REG_XCC_ID)")
        a("    s_getreg_b32 s52, hwreg(HW_REG_HW_ID)")
    if setprio is not None:
        a(f"    s_setprio {setprio}")
    if addr == "global":
        a(f"    s_cmp_ge_u32 s2, {nwg}")
        a("    s_cbranch_scc1 L_end")
    if xcd:
        assert nwg % 8 == 0
        a("    s_and_b32 s3, s2, 7")
        a("    s_lshr_b32 s2, s2, 3")
        a(f"    s_mul_i32 s3, s3, {nwg//8}")
        a("    s_add_u32 s2, s2, s3")
    offs = []
    nv = 1
    if layout == "wave":
        a(f"    s_mul_i32 s3, s2, {wgbytes}")
        if u == 1:
            a("    v_lshlrev_b32 v1, 4, v0")
            a("    v_add_u32 v1, s3, v1")
        else:
            a("    v_lshrrev_b32 v2, 6, v0")
            a("    v_and_b32 v1, 63, v0")
            a(f"    v_mul_u32_u24 v2, {1024*u}, v2")
            a("    v_lshl_add_u32 v1, v1, 4, s3")
            a("    v_add_u32 v1, v1, v2")
        cur = 1
        nv = 2
        for i in range(u):
            if i and i % 4 == 0:
                a(f"    v_add_u32 v{nv}, {4096*(i//4)}, v1")
                cur = nv
                nv += 1
            offs.append((cur, (i % 4) * 1024))
    elif layout == "wg":
        a(f"    s_mul_i32 s3, s2, {wgbytes}")
        a("    v_lshl_add_u32 v1, v0, 4, s3")
        nv = 2
        offs.append((1, 0))
        for i in range(1, u):
            a(f"    v_add_u32 v{nv}, {i*bt*16}, v1")
            offs.append((nv, 0))
            nv += 1
    elif layout == "grid":
        a(f"    s_mul_i32 s3, s2, {bt*16}")
        a("    v_lshl_add_u32 v1, v0, 4, s3")
        nv = 2
        offs.append((1, 0))
        for i in range(1, u):
            a(f"    v_add_u32 v{nv}, {i*bt*16*nwg}, v1")
            offs.append((nv, 0))
            nv += 1
    else:
        raise ValueError(layout)
    assert not (trace and nv > 3), "v3 clash"
    if trace: nv = 4
    base = (nv + 3) // 4 * 4
    X = [base + 8 * i for i in range(u)]
    F = [base + 8 * i + 4 for i in range(u)]
    T = base + 8 * u
    if addr == "buffer":
        a(f"    s_mov_b32 s14, 0x{NBYTES:x}")
        a("    s_mov_b32 s15, 0x00020000")
        a(f"    s_mov_b32 s18, 0x{NBYTES:x}")
        a("    s_mov_b32 s19, 0x00020000")
        a(f"    s_mov_b32 s22, 0x{NBYTES:x}")
        a("    s_mov_b32 s23, 0x00020000")
    a("    s_waitcnt lgkmcnt(0)")
    if trace:
        a("    s_memrealtime s[42:43]")
    def imm(o):
        return f" offset:{o}" if o else ""
    def load(dst, off, which):
        v, o = off
        if addr == "global":
            sb = "s[4:5]" if which == "x" else "s[6:7]"
            a(f"    global_load_dwordx4 v[{dst}:{dst+3}], v{v}, {sb}{imm(o)} {ld}".rstrip())
        else:
            sb = "s[12:15]" if which == "x" else "s[16:19]"
            a(f"    buffer_load_dwordx4 v[{dst}:{dst+3}], v{v}, {sb}, 0 offen{imm(o)} {ld}".rstrip())
    def store(src, off):
        v, o = off
        if addr == "global":
            a(f"    global_store_dwordx4 v{v}, v[{src}:{src+3}], s[10:11]{imm(o)} {st}".rstrip())
        else:
            a(f"    buffer_store_dwordx4 v[{src}:{src+3}], v{v}, s[20:23], 0 offen{imm(o)} {st}".rstrip())
    if addr == "buffer":
        a("    s_mov_b64 s[12:13], s[4:5]")
        a("    s_mov_b64 s[16:17], s[6:7]")
    if alpha == "sload_first":
        a("    s_load_dword s24, s[8:9], 0")
    for i in range(u):
        if order == "xf":
            load(X[i], offs[i], "x"); load(F[i], offs[i], "f")
        else:
            load(F[i], offs[i], "f"); load(X[i], offs[i], "x")
        if i == 0 and alpha == "sload":
            a("    s_load_dword s24, s[8:9], 0")
    if addr == "buffer":
        a("    s_mov_b64 s[20:21], s[10:11]")
    if touch:
        a("    s_mov_b64 exec, 1")
        a(f"    global_load_dword v{T+16}, v1, s[10:11]")
        a("    s_mov_b64 exec, -1")
    a("    s_waitcnt lgkmcnt(0)")
    a("    s_lshl_b32 s24, s24, 16")
    a("    s_mov_b32 s25, s24")
    nstores = 1 if touch else 0
    for i in range(u):
        outstanding = 2 * (u - 1 - i) + nstores
        x, f = X[i], F[i]
        if mode == "exact":
            if order == "fx":
                a(f"    s_waitcnt vmcnt({min(outstanding+1,63)})")
            else:
                a(f"    s_waitcnt vmcnt({min(outstanding,63)})")
            if trace and i == 0:
                a("    s_memrealtime s[44:45]")
            if trace and i == u - 1:
                a("    s_memrealtime s[46:47]")
            for j in range(4):
                a(f"    v_lshlrev_b32 v{T+2*j}, 16, v{f+j}")
                a(f"    v_and_b32 v{T+2*j+1}, 0xffff0000, v{f+j}")
            for j in range(4):
                a(f"    v_pk_mul_f32 v[{T+2*j}:{T+2*j+1}], v[{T+2*j}:{T+2*j+1}], s[24:25]")
            for j in range(4):
                a(f"    v_cvt_pk_bf16_f32 v{f+j}, v{T+2*j}, v{T+2*j+1}")
            for j in range(4):
                a(f"    v_lshlrev_b32 v{T+2*j}, 16, v{f+j}")
                a(f"    v_and_b32 v{T+2*j+1}, 0xffff0000, v{f+j}")
            if order == "fx":
                a(f"    s_waitcnt vmcnt({min(outstanding,63)})")
            for j in range(4):
                a(f"    v_lshlrev_b32 v{T+8+2*j}, 16, v{x+j}")
                a(f"    v_and_b32 v{T+8+2*j+1}, 0xffff0000, v{x+j}")
            for j in range(4):
                a(f"    v_pk_add_f32 v[{T+2*j}:{T+2*j+1}], v[{T+2*j}:{T+2*j+1}], v[{T+8+2*j}:{T+8+2*j+1}]")
            for j in range(4):
                a(f"    v_cvt_pk_bf16_f32 v{x+j}, v{T+2*j}, v{T+2*j+1}")
        elif mode == "fused":
            a(f"    s_waitcnt vmcnt({min(outstanding,63)})")
            for j in range(4):
                a(f"    v_lshlrev_b32 v{T+2*j}, 16, v{f+j}")
                a(f"    v_and_b32 v{T+2*j+1}, 0xffff0000, v{f+j}")
                a(f"    v_lshlrev_b32 v{T+8+2*j}, 16, v{x+j}")
                a(f"    v_and_b32 v{T+8+2*j+1}, 0xffff0000, v{x+j}")
            for j in range(4):
                a(f"    v_pk_fma_f32 v[{T+2*j}:{T+2*j+1}], v[{T+2*j}:{T+2*j+1}], s[24:25], v[{T+8+2*j}:{T+8+2*j+1}]")
            for j in range(4):
                a(f"    v_cvt_pk_bf16_f32 v{x+j}, v{T+2*j}, v{T+2*j+1}")
        else:
            raise ValueError(mode)
        store(x, offs[i])
        nstores += 1
    if trace:
        a("    s_memrealtime s[48:49]")
        a("    s_waitcnt vmcnt(0)")
        a("    s_memrealtime s[50:51]")
        a("    s_waitcnt lgkmcnt(0)")
        a("    s_mov_b64 exec, 1")
        a(f"    v_mov_b32 v{T}, s40")
        a(f"    v_mov_b32 v{T+1}, s42")
        a(f"    v_mov_b32 v{T+2}, s44")
        a(f"    v_mov_b32 v{T+3}, s46")
        a(f"    v_mov_b32 v{T+4}, s48")
        a(f"    v_mov_b32 v{T+5}, s50")
        a(f"    v_mov_b32 v{T+6}, s39")
        a(f"    v_mov_b32 v{T+7}, s52")
        a(f"    global_store_dwordx4 v3, v[{T}:{T+3}], s[36:37]")
        a(f"    global_store_dwordx4 v3, v[{T+4}:{T+7}], s[36:37] offset:16")
    if prof:
        a("    s_waitcnt vmcnt(0)")
        a("    s_memrealtime s[30:31]")
        a("    s_waitcnt lgkmcnt(0)")
        a("    s_mov_b64 exec, 1")
        a("    s_sub_u32 s32, s30, s28")
        a("    s_not_b32 s33, s28")
        a("    v_mov_b32 v0, 0")
        a("    v_mov_b32 v1, s32")
        a("    v_mov_b32 v2, s33")
        a("    v_mov_b32 v3, s30")
        a("    global_atomic_umax v0, v1, s[34:35] sc1")
        a("    global_atomic_umax v0, v2, s[34:35] offset:4 sc1")
        a("    global_atomic_umax v0, v3, s[34:35] offset:8 sc1")
        a("    v_mov_b32 v2, s28")
        a("    global_atomic_umax v0, v2, s[34:35] offset:12 sc1")
    if spin is not None:
        a("    s_waitcnt vmcnt(0)")
        a("L_spin:")
        a("    s_memrealtime s[30:31]")
        a("    s_waitcnt lgkmcnt(0)")
        a("    s_sub_u32 s30, s30, s28")
        a(f"    s_cmp_lt_u32 s30, {spin}")
        a("    s_cbranch_scc1 L_spin")
    if endwait:
        a("    s_waitcnt vmcnt(0)")
    a("L_end:")
    a("    s_endpgm")
    nvg = T + 16 + (1 if touch else 0)
    if vgpr: nvg = max(nvg, vgpr)
    acc = (nvg + 3) // 4 * 4
    a('.section .rodata,"a"')
    a(".p2align 6")
    a(f".amdhsa_kernel {NAME}")
    a(f"  .amdhsa_next_free_vgpr {nvg}")
    a(f"  .amdhsa_next_free_sgpr {sgpr or (56 if trace else 40 if (spin is not None or prof) else 32)}")
    a(f"  .amdhsa_accum_offset {acc}")
    a("  .amdhsa_group_segment_fixed_size 0")
    a("  .amdhsa_kernarg_size 48")
    a("  .amdhsa_user_sgpr_count 2")
    a("  .amdhsa_user_sgpr_kernarg_segment_ptr 1")
    a("  .amdhsa_system_sgpr_workgroup_id_x 1")
    a("  .amdhsa_float_denorm_mode_32 3")
    if extra_desc:
        a(extra_desc)
    a(".end_amdhsa_kernel")
    return "\n".join(L) + "\n"

if __name__ == "__main__":
    p = argparse.ArgumentParser()
    p.add_argument("out")
    p.add_argument("kv", nargs="*")
    args = p.parse_args()
    kw = {}
    for kv in args.kv:
        k, v = kv.split("=", 1)
        if k in ("bt", "u", "vgpr", "sgpr", "setprio", "xcd", "touch", "spin", "prof", "trace"): v = int(v)
        if k in ("endwait",): v = bool(int(v))
        if k in ("ld", "st"): v = v.replace("+", " ")
        kw[k] = v
    open(args.out, "w").write(gen(**kw))
```

```python
import sys, argparse
from gen import HEADER, NBYTES, NAME

def gen(bt=256, u=7, depth=7, layout="wave", ld="", st="", mode="exact", order="xf",
        trace=0, xcd=0, nost=0, vgpr=None, sgpr=None, ldpos="before", spin=None, smask=1, only=None,
        amp=0, pt='end', sel=None, base_t=300, rnd=0):
    wgbytes = bt * 16 * u
    assert NBYTES % wgbytes == 0, (bt, u)
    nwg = NBYTES // wgbytes
    depth = min(depth, u)
    L = []
    a = L.append
    a(HEADER + f"; @launch grid=({nwg},1,1) block=({bt},1,1) lds=0")
    a('.amdgcn_target "amdgcn-amd-amdhsa--gfx950"')
    a(".text")
    a(f".globl {NAME}")
    a(".p2align 8")
    a(f".type {NAME},@function")
    a(f"{NAME}:")
    if trace or spin is not None or amp:
        a("    s_memrealtime s[40:41]")
    a("    s_load_dwordx8 s[4:11], s[0:1], 0      ; x, fx, alpha, out")
    if amp:
        a("    s_load_dwordx2 s[34:35], s[0:1], 32")
    def stamp(name):
        if amp and pt == name:
            a("    s_memrealtime s[46:47]")
    TR = 1
    nv = 2
    if trace:
        a("    s_load_dwordx2 s[36:37], s[0:1], 40")
        a(f"    s_mul_i32 s38, s2, {bt//64}")
        a(f"    v_lshrrev_b32 v{TR}, 6, v0")
        a(f"    v_add_u32 v{TR}, s38, v{TR}")
        a(f"    v_lshlrev_b32 v{TR}, 5, v{TR}")
        a("    s_getreg_b32 s39, hwreg(HW_REG_XCC_ID)")
        a("    s_getreg_b32 s52, hwreg(HW_REG_HW_ID)")
    a(f"    s_cmp_ge_u32 s2, {nwg}")
    a("    s_cbranch_scc1 L_end")
    if only is not None:
        a("    s_and_b32 s3, s2, 7")
        a(f"    s_cmp_ge_u32 s3, {only}")
        a("    s_cbranch_scc1 L_end")
    if xcd:
        assert nwg % 8 == 0
        a("    s_and_b32 s3, s2, 7")
        a("    s_lshr_b32 s2, s2, 3")
        a(f"    s_mul_i32 s3, s3, {nwg//8}")
        a("    s_add_u32 s2, s2, s3")
    offs = []
    B = nv
    if layout == "wave":
        a(f"    s_mul_i32 s3, s2, {wgbytes}")
        if u == 1:
            a(f"    v_lshl_add_u32 v{B}, v0, 4, s3")
        else:
            a(f"    v_lshrrev_b32 v{B+1}, 6, v0")
            a(f"    v_and_b32 v{B}, 63, v0")
            a(f"    v_mul_u32_u24 v{B+1}, {1024*u}, v{B+1}")
            a(f"    v_lshl_add_u32 v{B}, v{B}, 4, s3")
            a(f"    v_add_u32 v{B}, v{B}, v{B+1}")
        cur = B
        nv = B + 1
        for i in range(u):
            if i and i % 4 == 0:
                a(f"    v_add_u32 v{nv}, {4096*(i//4)}, v{B}")
                cur = nv
                nv += 1
            offs.append((cur, (i % 4) * 1024))
        nv = max(nv, B + 2)
    elif layout in ("wg", "grid"):
        stride = bt * 16 if layout == "wg" else bt * 16 * nwg
        a(f"    s_mul_i32 s3, s2, {wgbytes if layout == 'wg' else bt*16}")
        a(f"    v_lshl_add_u32 v{B}, v0, 4, s3")
        nv = B + 1
        offs.append((B, 0))
        for i in range(1, u):
            a(f"    v_add_u32 v{nv}, {i*stride}, v{B}")
            offs.append((nv, 0))
            nv += 1
    else:
        raise ValueError(layout)
    base = (nv + 3) // 4 * 4
    nbuf = u
    X = [base + 8 * i for i in range(nbuf)]
    F = [base + 8 * i + 4 for i in range(nbuf)]
    T = base + 8 * nbuf
    MASK = "s26" if smask else "0xffff0000"
    if smask:
        a("    s_mov_b32 s26, 0xffff0000")
    a("    s_waitcnt lgkmcnt(0)")
    stamp('karg')
    if trace:
        a("    s_memrealtime s[42:43]")
    q = []
    def imm(o):
        return f" offset:{o}" if o else ""
    def load(i):
        v, o = offs[i]
        for w in order:
            dst = X[i] if w == "x" else F[i]
            sb = "s[4:5]" if w == "x" else "s[6:7]"
            a(f"    global_load_dwordx4 v[{dst}:{dst+3}], v{v}, {sb}{imm(o)} {ld}".rstrip())
            q.append((w, i))
    def store(i):
        if nost: return
        v, o = offs[i]
        a(f"    global_store_dwordx4 v{v}, v[{X[i]}:{X[i]+3}], s[10:11]{imm(o)} {st}".rstrip())
        q.append(("s", i))
    def wait(tag):
        idx = q.index(tag)
        n = len(q) - 1 - idx
        a(f"    s_waitcnt vmcnt({min(n,63)})")
        del q[:idx + 1]
    for i in range(depth):
        load(i)
        if i == 0:
            a("    s_load_dword s24, s[8:9], 0")
    stamp('ldiss')
    if amp:
        a("    s_cmp_lg_u32 s2, 0")
        a("    s_cbranch_scc1 L_nopub")
        a("    v_cmp_eq_u32 vcc, 0, v0")
        a("    s_and_saveexec_b64 s[32:33], vcc")
        a("    s_cbranch_execz L_nopub2")
        a("    v_mov_b32 v1, s40")
        a("    v_or_b32 v1, 1, v1")
        a("    global_store_dword v0, v1, s[34:35] sc0 sc1")
        a("L_nopub2:")
        a("    s_mov_b64 exec, s[32:33]")
        a("L_nopub:")
    a("    s_waitcnt lgkmcnt(0)")
    stamp('alpha')
    a("    s_lshl_b32 s24, s24, 16")
    a("    s_mov_b32 s25, s24")
    for i in range(u):
        x, f = X[i], F[i]
        first = (order[0], i); last = (order[1], i)
        if mode == "exact":
            if order == "fx":
                wait(first)
            else:
                wait(last)
            if trace and i == 0:
                a("    s_memrealtime s[44:45]")
            if trace and i == u - 1:
                a("    s_memrealtime s[46:47]")
            if i == 0: stamp('d0')
            if i == u - 1: stamp('dN')
            if ldpos == "before" and i + depth < u and order != "fx":
                load(i + depth)
            for j in range(4):
                a(f"    v_lshlrev_b32 v{T+2*j}, 16, v{f+j}")
                a(f"    v_and_b32 v{T+2*j+1}, {MASK}, v{f+j}")
            for j in range(4):
                a(f"    v_pk_mul_f32 v[{T+2*j}:{T+2*j+1}], v[{T+2*j}:{T+2*j+1}], s[24:25]")
            for j in range(4):
                a(f"    v_cvt_pk_bf16_f32 v{f+j}, v{T+2*j}, v{T+2*j+1}")
            for j in range(4):
                a(f"    v_lshlrev_b32 v{T+2*j}, 16, v{f+j}")
                a(f"    v_and_b32 v{T+2*j+1}, {MASK}, v{f+j}")
            if order == "fx":
                wait(last)
                if ldpos == "before" and i + depth < u:
                    load(i + depth)
            for j in range(4):
                a(f"    v_lshlrev_b32 v{T+8+2*j}, 16, v{x+j}")
                a(f"    v_and_b32 v{T+8+2*j+1}, {MASK}, v{x+j}")
            for j in range(4):
                a(f"    v_pk_add_f32 v[{T+2*j}:{T+2*j+1}], v[{T+2*j}:{T+2*j+1}], v[{T+8+2*j}:{T+8+2*j+1}]")
            for j in range(4):
                a(f"    v_cvt_pk_bf16_f32 v{x+j}, v{T+2*j}, v{T+2*j+1}")
        elif mode == "fused":
            wait(last)
            if trace and i == 0:
                a("    s_memrealtime s[44:45]")
            if trace and i == u - 1:
                a("    s_memrealtime s[46:47]")
            if ldpos == "before" and i + depth < u:
                load(i + depth)
            for j in range(4):
                a(f"    v_lshlrev_b32 v{T+2*j}, 16, v{f+j}")
                a(f"    v_and_b32 v{T+2*j+1}, {MASK}, v{f+j}")
                a(f"    v_lshlrev_b32 v{T+8+2*j}, 16, v{x+j}")
                a(f"    v_and_b32 v{T+8+2*j+1}, {MASK}, v{x+j}")
            for j in range(4):
                a(f"    v_pk_fma_f32 v[{T+2*j}:{T+2*j+1}], v[{T+2*j}:{T+2*j+1}], s[24:25], v[{T+8+2*j}:{T+8+2*j+1}]")
            for j in range(4):
                a(f"    v_cvt_pk_bf16_f32 v{x+j}, v{T+2*j}, v{T+2*j+1}")
        store(i)
        if ldpos == "after" and i + depth < u:
            load(i + depth)
    if trace:
        a("    s_memrealtime s[48:49]")
        a("    s_waitcnt vmcnt(0)")
        a("    s_memrealtime s[50:51]")
        a("    s_waitcnt lgkmcnt(0)")
        a("    s_mov_b64 exec, 1")
        for j, sr in enumerate((40, 42, 44, 46, 48, 50, 39, 52)):
            a(f"    v_mov_b32 v{T+j}, s{sr}")
        a(f"    global_store_dwordx4 v{TR}, v[{T}:{T+3}], s[36:37]")
        a(f"    global_store_dwordx4 v{TR}, v[{T+4}:{T+7}], s[36:37] offset:16")
    if amp:
        stamp('stiss')
        a("    s_waitcnt vmcnt(0)")
        stamp('end')
        if pt == 'entry':
            a("    s_mov_b32 s46, s40")
        if sel is not None:
            a(f"    s_cmp_lg_u32 s2, {sel}")
            a("    s_cbranch_scc1 L_end")
        a("    s_load_dword s36, s[34:35], 0")
        a("    s_waitcnt lgkmcnt(0)")
        a("    s_cmp_lg_u32 s36, 0")
        a("    s_cbranch_scc1 L_gotref")
        a("    v_mov_b32 v1, 0")
        a("    s_mov_b32 s38, 0")
        a("L_poll:")
        a("    s_add_u32 s38, s38, 1")
        a("    s_cmp_gt_u32 s38, 200")
        a("    s_cbranch_scc1 L_end")
        a("    s_sleep 4")
        a("    global_load_dword v2, v1, s[34:35] sc0 sc1")
        a("    s_waitcnt vmcnt(0)")
        a("    v_readfirstlane_b32 s36, v2")
        a("    s_cmp_eq_u32 s36, 0")
        a("    s_cbranch_scc1 L_poll")
        a("L_gotref:")
        a("    s_sub_u32 s37, s46, s36")
        a(f"    s_mul_i32 s37, s37, {amp}")
        a(f"    s_add_u32 s37, s37, {base_t}")
        a("    s_min_i32 s37, s37, 20000")
        a("L_spin2:")
        a("    s_sleep 2")
        a("    s_memrealtime s[30:31]")
        a("    s_waitcnt lgkmcnt(0)")
        a("    s_sub_u32 s30, s30, s36")
        a("    s_cmp_lt_i32 s30, s37")
        a("    s_cbranch_scc1 L_spin2")
    if spin is not None:
        a("    s_waitcnt vmcnt(0)")
        a("L_spin:")
        a("    s_memrealtime s[30:31]")
        a("    s_waitcnt lgkmcnt(0)")
        a("    s_sub_u32 s30, s30, s40")
        a(f"    s_cmp_lt_u32 s30, {spin}")
        a("    s_cbranch_scc1 L_spin")
    a("L_end:")
    a("    s_endpgm")
    nvg = T + 16
    if vgpr: nvg = max(nvg, vgpr)
    acc = (nvg + 3) // 4 * 4
    a('.section .rodata,"a"')
    a(".p2align 6")
    a(f".amdhsa_kernel {NAME}")
    a(f"  .amdhsa_next_free_vgpr {nvg}")
    a(f"  .amdhsa_next_free_sgpr {sgpr or (56 if (trace or spin is not None or amp) else 32)}")
    a(f"  .amdhsa_accum_offset {acc}")
    a("  .amdhsa_group_segment_fixed_size 0")
    a("  .amdhsa_kernarg_size 48")
    a("  .amdhsa_user_sgpr_count 2")
    a("  .amdhsa_user_sgpr_kernarg_segment_ptr 1")
    a("  .amdhsa_system_sgpr_workgroup_id_x 1")
    a("  .amdhsa_float_denorm_mode_32 3")
    a(".end_amdhsa_kernel")
    return "\n".join(L) + "\n"

if __name__ == "__main__":
    out = sys.argv[1]
    kw = {}
    for kv in sys.argv[2:]:
        k, v = kv.split("=", 1)
        if k in ("ld", "st"): v = v.replace("+", " ")
        elif v.lstrip("-").isdigit(): v = int(v)
        kw[k] = v
    open(out, "w").write(gen(**kw))
```

```python
import sys, argparse
from gen import HEADER, NBYTES, NAME

def gen(bt=256, u=7, depth=7, layout="wave", ld="", st="", mode="exact", order="xf",
        trace=0, xcd=0, nost=0, vgpr=None, sgpr=None, ldpos="before", spin=None, smask=1, only=None,
        amp=0, pt='end', sel=None, selmod=None, base_t=300, rnd=0):
    wgbytes = bt * 16 * u
    assert NBYTES % wgbytes == 0, (bt, u)
    nwg = NBYTES // wgbytes
    depth = min(depth, u)
    L = []
    a = L.append
    a(HEADER + f"; @launch grid=({nwg},1,1) block=({bt},1,1) lds=0")
    a('.amdgcn_target "amdgcn-amd-amdhsa--gfx950"')
    a(".text")
    a(f".globl {NAME}")
    a(".p2align 8")
    a(f".type {NAME},@function")
    a(f"{NAME}:")
    if trace or spin is not None or amp:
        a("    s_memrealtime s[40:41]")
    a("    s_load_dwordx8 s[4:11], s[0:1], 0      ; x, fx, alpha, out")
    if amp:
        a("    s_load_dwordx2 s[34:35], s[0:1], 32")
    def stamp(name):
        if amp and pt == name:
            a("    s_memrealtime s[46:47]")
    TR = 1
    nv = 2
    if trace:
        a("    s_load_dwordx2 s[36:37], s[0:1], 40")
        a(f"    s_mul_i32 s38, s2, {bt//64}")
        a(f"    v_lshrrev_b32 v{TR}, 6, v0")
        a(f"    v_add_u32 v{TR}, s38, v{TR}")
        a(f"    v_lshlrev_b32 v{TR}, 5, v{TR}")
        a("    s_getreg_b32 s39, hwreg(HW_REG_XCC_ID)")
        a("    s_getreg_b32 s52, hwreg(HW_REG_HW_ID)")
    a(f"    s_cmp_ge_u32 s2, {nwg}")
    a("    s_cbranch_scc1 L_end")
    if only is not None:
        a("    s_and_b32 s3, s2, 7")
        a(f"    s_cmp_ge_u32 s3, {only}")
        a("    s_cbranch_scc1 L_end")
    if xcd:
        assert nwg % 8 == 0
        a("    s_and_b32 s3, s2, 7")
        a("    s_lshr_b32 s2, s2, 3")
        a(f"    s_mul_i32 s3, s3, {nwg//8}")
        a("    s_add_u32 s2, s2, s3")
    offs = []
    B = nv
    if layout == "wave":
        a(f"    s_mul_i32 s3, s2, {wgbytes}")
        if u == 1:
            a(f"    v_lshl_add_u32 v{B}, v0, 4, s3")
        else:
            a(f"    v_lshrrev_b32 v{B+1}, 6, v0")
            a(f"    v_and_b32 v{B}, 63, v0")
            a(f"    v_mul_u32_u24 v{B+1}, {1024*u}, v{B+1}")
            a(f"    v_lshl_add_u32 v{B}, v{B}, 4, s3")
            a(f"    v_add_u32 v{B}, v{B}, v{B+1}")
        cur = B
        nv = B + 1
        for i in range(u):
            if i and i % 4 == 0:
                a(f"    v_add_u32 v{nv}, {4096*(i//4)}, v{B}")
                cur = nv
                nv += 1
            offs.append((cur, (i % 4) * 1024))
        nv = max(nv, B + 2)
    elif layout in ("wg", "grid"):
        stride = bt * 16 if layout == "wg" else bt * 16 * nwg
        a(f"    s_mul_i32 s3, s2, {wgbytes if layout == 'wg' else bt*16}")
        a(f"    v_lshl_add_u32 v{B}, v0, 4, s3")
        nv = B + 1
        offs.append((B, 0))
        for i in range(1, u):
            a(f"    v_add_u32 v{nv}, {i*stride}, v{B}")
            offs.append((nv, 0))
            nv += 1
    else:
        raise ValueError(layout)
    base = (nv + 3) // 4 * 4
    nbuf = u
    X = [base + 8 * i for i in range(nbuf)]
    F = [base + 8 * i + 4 for i in range(nbuf)]
    T = base + 8 * nbuf
    MASK = "s26" if smask else "0xffff0000"
    if smask:
        a("    s_mov_b32 s26, 0xffff0000")
    a("    s_waitcnt lgkmcnt(0)")
    stamp('karg')
    if trace:
        a("    s_memrealtime s[42:43]")
    q = []
    def imm(o):
        return f" offset:{o}" if o else ""
    def load(i):
        v, o = offs[i]
        for w in order:
            dst = X[i] if w == "x" else F[i]
            sb = "s[4:5]" if w == "x" else "s[6:7]"
            a(f"    global_load_dwordx4 v[{dst}:{dst+3}], v{v}, {sb}{imm(o)} {ld}".rstrip())
            q.append((w, i))
    def store(i):
        if nost: return
        v, o = offs[i]
        a(f"    global_store_dwordx4 v{v}, v[{X[i]}:{X[i]+3}], s[10:11]{imm(o)} {st}".rstrip())
        q.append(("s", i))
    def wait(tag):
        idx = q.index(tag)
        n = len(q) - 1 - idx
        a(f"    s_waitcnt vmcnt({min(n,63)})")
        del q[:idx + 1]
    for i in range(depth):
        load(i)
        if i == 0:
            a("    s_load_dword s24, s[8:9], 0")
    stamp('ldiss')
    if amp:
        a("    s_cmp_lg_u32 s2, 0")
        a("    s_cbranch_scc1 L_nopub")
        a("    v_cmp_eq_u32 vcc, 0, v0")
        a("    s_and_saveexec_b64 s[32:33], vcc")
        a("    s_cbranch_execz L_nopub2")
        a("    v_mov_b32 v1, s40")
        a("    v_or_b32 v1, 1, v1")
        a("    global_store_dword v0, v1, s[34:35] sc0 sc1")
        a("L_nopub2:")
        a("    s_mov_b64 exec, s[32:33]")
        a("L_nopub:")
    a("    s_waitcnt lgkmcnt(0)")
    stamp('alpha')
    a("    s_lshl_b32 s24, s24, 16")
    a("    s_mov_b32 s25, s24")
    for i in range(u):
        x, f = X[i], F[i]
        first = (order[0], i); last = (order[1], i)
        if mode == "exact":
            if order == "fx":
                wait(first)
            else:
                wait(last)
            if trace and i == 0:
                a("    s_memrealtime s[44:45]")
            if trace and i == u - 1:
                a("    s_memrealtime s[46:47]")
            if i == 0: stamp('d0')
            if i == u - 1: stamp('dN')
            if ldpos == "before" and i + depth < u and order != "fx":
                load(i + depth)
            for j in range(4):
                a(f"    v_lshlrev_b32 v{T+2*j}, 16, v{f+j}")
                a(f"    v_and_b32 v{T+2*j+1}, {MASK}, v{f+j}")
            for j in range(4):
                a(f"    v_pk_mul_f32 v[{T+2*j}:{T+2*j+1}], v[{T+2*j}:{T+2*j+1}], s[24:25]")
            for j in range(4):
                a(f"    v_cvt_pk_bf16_f32 v{f+j}, v{T+2*j}, v{T+2*j+1}")
            for j in range(4):
                a(f"    v_lshlrev_b32 v{T+2*j}, 16, v{f+j}")
                a(f"    v_and_b32 v{T+2*j+1}, {MASK}, v{f+j}")
            if order == "fx":
                wait(last)
                if ldpos == "before" and i + depth < u:
                    load(i + depth)
            for j in range(4):
                a(f"    v_lshlrev_b32 v{T+8+2*j}, 16, v{x+j}")
                a(f"    v_and_b32 v{T+8+2*j+1}, {MASK}, v{x+j}")
            for j in range(4):
                a(f"    v_pk_add_f32 v[{T+2*j}:{T+2*j+1}], v[{T+2*j}:{T+2*j+1}], v[{T+8+2*j}:{T+8+2*j+1}]")
            for j in range(4):
                a(f"    v_cvt_pk_bf16_f32 v{x+j}, v{T+2*j}, v{T+2*j+1}")
        elif mode == "fused":
            wait(last)
            if trace and i == 0:
                a("    s_memrealtime s[44:45]")
            if trace and i == u - 1:
                a("    s_memrealtime s[46:47]")
            if ldpos == "before" and i + depth < u:
                load(i + depth)
            for j in range(4):
                a(f"    v_lshlrev_b32 v{T+2*j}, 16, v{f+j}")
                a(f"    v_and_b32 v{T+2*j+1}, {MASK}, v{f+j}")
                a(f"    v_lshlrev_b32 v{T+8+2*j}, 16, v{x+j}")
                a(f"    v_and_b32 v{T+8+2*j+1}, {MASK}, v{x+j}")
            for j in range(4):
                a(f"    v_pk_fma_f32 v[{T+2*j}:{T+2*j+1}], v[{T+2*j}:{T+2*j+1}], s[24:25], v[{T+8+2*j}:{T+8+2*j+1}]")
            for j in range(4):
                a(f"    v_cvt_pk_bf16_f32 v{x+j}, v{T+2*j}, v{T+2*j+1}")
        store(i)
        if ldpos == "after" and i + depth < u:
            load(i + depth)
    if trace:
        a("    s_memrealtime s[48:49]")
        a("    s_waitcnt vmcnt(0)")
        a("    s_memrealtime s[50:51]")
        a("    s_waitcnt lgkmcnt(0)")
        a("    s_mov_b64 exec, 1")
        for j, sr in enumerate((40, 42, 44, 46, 48, 50, 39, 52)):
            a(f"    v_mov_b32 v{T+j}, s{sr}")
        a(f"    global_store_dwordx4 v{TR}, v[{T}:{T+3}], s[36:37]")
        a(f"    global_store_dwordx4 v{TR}, v[{T+4}:{T+7}], s[36:37] offset:16")
    if amp:
        stamp('stiss')
        a("    s_waitcnt vmcnt(0)")
        stamp('end')
        if pt == 'entry':
            a("    s_mov_b32 s46, s40")
        if sel is not None:
            a(f"    s_cmp_lg_u32 s2, {sel}")
            a("    s_cbranch_scc1 L_end")
        if selmod is not None:
            a("    s_and_b32 s38, s2, 7")
            a(f"    s_cmp_lg_u32 s38, {selmod}")
            a("    s_cbranch_scc1 L_end")
        a("    s_load_dword s36, s[34:35], 0")
        a("    s_waitcnt lgkmcnt(0)")
        a("    s_cmp_lg_u32 s36, 0")
        a("    s_cbranch_scc1 L_gotref")
        a("    v_mov_b32 v1, 0")
        a("    s_mov_b32 s38, 0")
        a("L_poll:")
        a("    s_add_u32 s38, s38, 1")
        a("    s_cmp_gt_u32 s38, 200")
        a("    s_cbranch_scc1 L_end")
        a("    s_sleep 4")
        a("    global_load_dword v2, v1, s[34:35] sc0 sc1")
        a("    s_waitcnt vmcnt(0)")
        a("    v_readfirstlane_b32 s36, v2")
        a("    s_cmp_eq_u32 s36, 0")
        a("    s_cbranch_scc1 L_poll")
        a("L_gotref:")
        if pt == 'xcc':
            a("    s_getreg_b32 s37, hwreg(HW_REG_XCC_ID)")
            a("    s_and_b32 s37, s37, 15")
        else:
            a("    s_sub_u32 s37, s46, s36")
        a(f"    s_mul_i32 s37, s37, {amp}")
        a(f"    s_add_u32 s37, s37, {base_t}")
        a("    s_min_i32 s37, s37, 20000")
        a("L_spin2:")
        a("    s_sleep 2")
        a("    s_memrealtime s[30:31]")
        a("    s_waitcnt lgkmcnt(0)")
        a("    s_sub_u32 s30, s30, s36")
        a("    s_cmp_lt_i32 s30, s37")
        a("    s_cbranch_scc1 L_spin2")
    if spin is not None:
        a("    s_waitcnt vmcnt(0)")
        a("L_spin:")
        a("    s_memrealtime s[30:31]")
        a("    s_waitcnt lgkmcnt(0)")
        a("    s_sub_u32 s30, s30, s40")
        a(f"    s_cmp_lt_u32 s30, {spin}")
        a("    s_cbranch_scc1 L_spin")
    a("L_end:")
    a("    s_endpgm")
    nvg = T + 16
    if vgpr: nvg = max(nvg, vgpr)
    acc = (nvg + 3) // 4 * 4
    a('.section .rodata,"a"')
    a(".p2align 6")
    a(f".amdhsa_kernel {NAME}")
    a(f"  .amdhsa_next_free_vgpr {nvg}")
    a(f"  .amdhsa_next_free_sgpr {sgpr or (56 if (trace or spin is not None or amp) else 32)}")
    a(f"  .amdhsa_accum_offset {acc}")
    a("  .amdhsa_group_segment_fixed_size 0")
    a("  .amdhsa_kernarg_size 48")
    a("  .amdhsa_user_sgpr_count 2")
    a("  .amdhsa_user_sgpr_kernarg_segment_ptr 1")
    a("  .amdhsa_system_sgpr_workgroup_id_x 1")
    a("  .amdhsa_float_denorm_mode_32 3")
    a(".end_amdhsa_kernel")
    return "\n".join(L) + "\n"

if __name__ == "__main__":
    out = sys.argv[1]
    kw = {}
    for kv in sys.argv[2:]:
        k, v = kv.split("=", 1)
        if k in ("ld", "st"): v = v.replace("+", " ")
        elif v.lstrip("-").isdigit(): v = int(v)
        kw[k] = v
    open(out, "w").write(gen(**kw))
```

```python
import sys, argparse
from gen import HEADER, NBYTES, NAME

def gen(bt=256, u=7, depth=7, layout="wave", ld="", st="", mode="exact", order="xf",
        trace=0, xcd=0, nost=0, vgpr=None, sgpr=None, ldpos="before", spin=None, smask=1, only=None,
        amp=0, pt='end', sel=None, selmod=None, base_t=300, rnd=0, prof=0):
    wgbytes = bt * 16 * u
    assert NBYTES % wgbytes == 0, (bt, u)
    nwg = NBYTES // wgbytes
    depth = min(depth, u)
    L = []
    a = L.append
    a(HEADER + f"; @launch grid=({nwg},1,1) block=({bt},1,1) lds=0")
    a('.amdgcn_target "amdgcn-amd-amdhsa--gfx950"')
    a(".text")
    a(f".globl {NAME}")
    a(".p2align 8")
    a(f".type {NAME},@function")
    a(f"{NAME}:")
    if trace or spin is not None or amp or prof:
        a("    s_memrealtime s[40:41]")
    a("    s_load_dwordx8 s[4:11], s[0:1], 0      ; x, fx, alpha, out")
    if amp or prof:
        a("    s_load_dwordx2 s[34:35], s[0:1], 32")
    def stamp(name):
        if (amp or prof) and pt == name:
            a("    s_memrealtime s[46:47]")
    TR = 1
    nv = 2
    if trace:
        a("    s_load_dwordx2 s[36:37], s[0:1], 40")
        a(f"    s_mul_i32 s38, s2, {bt//64}")
        a(f"    v_lshrrev_b32 v{TR}, 6, v0")
        a(f"    v_add_u32 v{TR}, s38, v{TR}")
        a(f"    v_lshlrev_b32 v{TR}, 5, v{TR}")
        a("    s_getreg_b32 s39, hwreg(HW_REG_XCC_ID)")
        a("    s_getreg_b32 s52, hwreg(HW_REG_HW_ID)")
    a(f"    s_cmp_ge_u32 s2, {nwg}")
    a("    s_cbranch_scc1 L_end")
    if only is not None:
        a("    s_and_b32 s3, s2, 7")
        a(f"    s_cmp_ge_u32 s3, {only}")
        a("    s_cbranch_scc1 L_end")
    if xcd:
        assert nwg % 8 == 0
        a("    s_and_b32 s3, s2, 7")
        a("    s_lshr_b32 s2, s2, 3")
        a(f"    s_mul_i32 s3, s3, {nwg//8}")
        a("    s_add_u32 s2, s2, s3")
    offs = []
    B = nv
    if layout == "wave":
        a(f"    s_mul_i32 s3, s2, {wgbytes}")
        if u == 1:
            a(f"    v_lshl_add_u32 v{B}, v0, 4, s3")
        else:
            a(f"    v_lshrrev_b32 v{B+1}, 6, v0")
            a(f"    v_and_b32 v{B}, 63, v0")
            a(f"    v_mul_u32_u24 v{B+1}, {1024*u}, v{B+1}")
            a(f"    v_lshl_add_u32 v{B}, v{B}, 4, s3")
            a(f"    v_add_u32 v{B}, v{B}, v{B+1}")
        cur = B
        nv = B + 1
        for i in range(u):
            if i and i % 4 == 0:
                a(f"    v_add_u32 v{nv}, {4096*(i//4)}, v{B}")
                cur = nv
                nv += 1
            offs.append((cur, (i % 4) * 1024))
        nv = max(nv, B + 2)
    elif layout in ("wg", "grid"):
        stride = bt * 16 if layout == "wg" else bt * 16 * nwg
        a(f"    s_mul_i32 s3, s2, {wgbytes if layout == 'wg' else bt*16}")
        a(f"    v_lshl_add_u32 v{B}, v0, 4, s3")
        nv = B + 1
        offs.append((B, 0))
        for i in range(1, u):
            a(f"    v_add_u32 v{nv}, {i*stride}, v{B}")
            offs.append((nv, 0))
            nv += 1
    else:
        raise ValueError(layout)
    base = (nv + 3) // 4 * 4
    nbuf = u
    X = [base + 8 * i for i in range(nbuf)]
    F = [base + 8 * i + 4 for i in range(nbuf)]
    T = base + 8 * nbuf
    MASK = "s26" if smask else "0xffff0000"
    if smask:
        a("    s_mov_b32 s26, 0xffff0000")
    a("    s_waitcnt lgkmcnt(0)")
    stamp('karg')
    if trace:
        a("    s_memrealtime s[42:43]")
    q = []
    def imm(o):
        return f" offset:{o}" if o else ""
    def load(i):
        v, o = offs[i]
        for w in order:
            dst = X[i] if w == "x" else F[i]
            sb = "s[4:5]" if w == "x" else "s[6:7]"
            a(f"    global_load_dwordx4 v[{dst}:{dst+3}], v{v}, {sb}{imm(o)} {ld}".rstrip())
            q.append((w, i))
    def store(i):
        if nost: return
        v, o = offs[i]
        a(f"    global_store_dwordx4 v{v}, v[{X[i]}:{X[i]+3}], s[10:11]{imm(o)} {st}".rstrip())
        q.append(("s", i))
    def wait(tag):
        idx = q.index(tag)
        n = len(q) - 1 - idx
        a(f"    s_waitcnt vmcnt({min(n,63)})")
        del q[:idx + 1]
    for i in range(depth):
        load(i)
        if i == 0:
            a("    s_load_dword s24, s[8:9], 0")
    stamp('ldiss')
    if amp:
        a("    s_cmp_lg_u32 s2, 0")
        a("    s_cbranch_scc1 L_nopub")
        a("    v_cmp_eq_u32 vcc, 0, v0")
        a("    s_and_saveexec_b64 s[32:33], vcc")
        a("    s_cbranch_execz L_nopub2")
        a("    v_mov_b32 v1, s40")
        a("    v_or_b32 v1, 1, v1")
        a("    global_store_dword v0, v1, s[34:35] sc0 sc1")
        a("L_nopub2:")
        a("    s_mov_b64 exec, s[32:33]")
        a("L_nopub:")
    a("    s_waitcnt lgkmcnt(0)")
    stamp('alpha')
    a("    s_lshl_b32 s24, s24, 16")
    a("    s_mov_b32 s25, s24")
    for i in range(u):
        x, f = X[i], F[i]
        first = (order[0], i); last = (order[1], i)
        if mode == "exact":
            if order == "fx":
                wait(first)
            else:
                wait(last)
            if trace and i == 0:
                a("    s_memrealtime s[44:45]")
            if trace and i == u - 1:
                a("    s_memrealtime s[46:47]")
            if i == 0: stamp('d0')
            if i == u - 1: stamp('dN')
            if ldpos == "before" and i + depth < u and order != "fx":
                load(i + depth)
            for j in range(4):
                a(f"    v_lshlrev_b32 v{T+2*j}, 16, v{f+j}")
                a(f"    v_and_b32 v{T+2*j+1}, {MASK}, v{f+j}")
            for j in range(4):
                a(f"    v_pk_mul_f32 v[{T+2*j}:{T+2*j+1}], v[{T+2*j}:{T+2*j+1}], s[24:25]")
            for j in range(4):
                a(f"    v_cvt_pk_bf16_f32 v{f+j}, v{T+2*j}, v{T+2*j+1}")
            for j in range(4):
                a(f"    v_lshlrev_b32 v{T+2*j}, 16, v{f+j}")
                a(f"    v_and_b32 v{T+2*j+1}, {MASK}, v{f+j}")
            if order == "fx":
                wait(last)
                if ldpos == "before" and i + depth < u:
                    load(i + depth)
            for j in range(4):
                a(f"    v_lshlrev_b32 v{T+8+2*j}, 16, v{x+j}")
                a(f"    v_and_b32 v{T+8+2*j+1}, {MASK}, v{x+j}")
            for j in range(4):
                a(f"    v_pk_add_f32 v[{T+2*j}:{T+2*j+1}], v[{T+2*j}:{T+2*j+1}], v[{T+8+2*j}:{T+8+2*j+1}]")
            for j in range(4):
                a(f"    v_cvt_pk_bf16_f32 v{x+j}, v{T+2*j}, v{T+2*j+1}")
        elif mode == "fused":
            wait(last)
            if trace and i == 0:
                a("    s_memrealtime s[44:45]")
            if trace and i == u - 1:
                a("    s_memrealtime s[46:47]")
            if ldpos == "before" and i + depth < u:
                load(i + depth)
            for j in range(4):
                a(f"    v_lshlrev_b32 v{T+2*j}, 16, v{f+j}")
                a(f"    v_and_b32 v{T+2*j+1}, {MASK}, v{f+j}")
                a(f"    v_lshlrev_b32 v{T+8+2*j}, 16, v{x+j}")
                a(f"    v_and_b32 v{T+8+2*j+1}, {MASK}, v{x+j}")
            for j in range(4):
                a(f"    v_pk_fma_f32 v[{T+2*j}:{T+2*j+1}], v[{T+2*j}:{T+2*j+1}], s[24:25], v[{T+8+2*j}:{T+8+2*j+1}]")
            for j in range(4):
                a(f"    v_cvt_pk_bf16_f32 v{x+j}, v{T+2*j}, v{T+2*j+1}")
        store(i)
        if ldpos == "after" and i + depth < u:
            load(i + depth)
    if trace:
        a("    s_memrealtime s[48:49]")
        a("    s_waitcnt vmcnt(0)")
        a("    s_memrealtime s[50:51]")
        a("    s_waitcnt lgkmcnt(0)")
        a("    s_mov_b64 exec, 1")
        for j, sr in enumerate((40, 42, 44, 46, 48, 50, 39, 52)):
            a(f"    v_mov_b32 v{T+j}, s{sr}")
        a(f"    global_store_dwordx4 v{TR}, v[{T}:{T+3}], s[36:37]")
        a(f"    global_store_dwordx4 v{TR}, v[{T+4}:{T+7}], s[36:37] offset:16")
    if prof:
        stamp('stiss')
        a("    s_waitcnt vmcnt(0)")
        stamp('end')
        a("    s_getreg_b32 s37, hwreg(HW_REG_XCC_ID)")
        a("    s_and_b32 s37, s37, 7")
        a("    s_lshl_b32 s37, s37, 2")
        a("    s_waitcnt lgkmcnt(0)")
        a("    s_mov_b64 exec, 1")
        a("    s_not_b32 s38, s40")
        a("    v_mov_b32 v1, s37")
        a("    v_mov_b32 v2, s38")
        a("    v_mov_b32 v3, s46")
        a("    global_atomic_umax v1, v2, s[34:35] sc1")
        a("    global_atomic_umax v1, v3, s[34:35] offset:32 sc1")
    if amp:
        stamp('stiss')
        a("    s_waitcnt vmcnt(0)")
        stamp('end')
        if pt == 'entry':
            a("    s_mov_b32 s46, s40")
        if sel is not None:
            a(f"    s_cmp_lg_u32 s2, {sel}")
            a("    s_cbranch_scc1 L_end")
        if selmod is not None:
            a("    s_and_b32 s38, s2, 7")
            a(f"    s_cmp_lg_u32 s38, {selmod}")
            a("    s_cbranch_scc1 L_end")
        a("    s_load_dword s36, s[34:35], 0")
        a("    s_waitcnt lgkmcnt(0)")
        a("    s_cmp_lg_u32 s36, 0")
        a("    s_cbranch_scc1 L_gotref")
        a("    v_mov_b32 v1, 0")
        a("    s_mov_b32 s38, 0")
        a("L_poll:")
        a("    s_add_u32 s38, s38, 1")
        a("    s_cmp_gt_u32 s38, 200")
        a("    s_cbranch_scc1 L_end")
        a("    s_sleep 4")
        a("    global_load_dword v2, v1, s[34:35] sc0 sc1")
        a("    s_waitcnt vmcnt(0)")
        a("    v_readfirstlane_b32 s36, v2")
        a("    s_cmp_eq_u32 s36, 0")
        a("    s_cbranch_scc1 L_poll")
        a("L_gotref:")
        if pt == 'xcc':
            a("    s_getreg_b32 s37, hwreg(HW_REG_XCC_ID)")
            a("    s_and_b32 s37, s37, 15")
        else:
            a("    s_sub_u32 s37, s46, s36")
        a(f"    s_mul_i32 s37, s37, {amp}")
        a(f"    s_add_u32 s37, s37, {base_t}")
        a("    s_min_i32 s37, s37, 20000")
        a("L_spin2:")
        a("    s_sleep 2")
        a("    s_memrealtime s[30:31]")
        a("    s_waitcnt lgkmcnt(0)")
        a("    s_sub_u32 s30, s30, s36")
        a("    s_cmp_lt_i32 s30, s37")
        a("    s_cbranch_scc1 L_spin2")
    if spin is not None:
        a("    s_waitcnt vmcnt(0)")
        a("L_spin:")
        a("    s_memrealtime s[30:31]")
        a("    s_waitcnt lgkmcnt(0)")
        a("    s_sub_u32 s30, s30, s40")
        a(f"    s_cmp_lt_u32 s30, {spin}")
        a("    s_cbranch_scc1 L_spin")
    a("L_end:")
    a("    s_endpgm")
    nvg = T + 16
    if vgpr: nvg = max(nvg, vgpr)
    acc = (nvg + 3) // 4 * 4
    a('.section .rodata,"a"')
    a(".p2align 6")
    a(f".amdhsa_kernel {NAME}")
    a(f"  .amdhsa_next_free_vgpr {nvg}")
    a(f"  .amdhsa_next_free_sgpr {sgpr or (56 if (trace or spin is not None or amp or prof) else 32)}")
    a(f"  .amdhsa_accum_offset {acc}")
    a("  .amdhsa_group_segment_fixed_size 0")
    a("  .amdhsa_kernarg_size 48")
    a("  .amdhsa_user_sgpr_count 2")
    a("  .amdhsa_user_sgpr_kernarg_segment_ptr 1")
    a("  .amdhsa_system_sgpr_workgroup_id_x 1")
    a("  .amdhsa_float_denorm_mode_32 3")
    a(".end_amdhsa_kernel")
    return "\n".join(L) + "\n"

if __name__ == "__main__":
    out = sys.argv[1]
    kw = {}
    for kv in sys.argv[2:]:
        k, v = kv.split("=", 1)
        if k in ("ld", "st"): v = v.replace("+", " ")
        elif v.lstrip("-").isdigit(): v = int(v)
        kw[k] = v
    open(out, "w").write(gen(**kw))
```

```python
import sys, argparse
from gen import HEADER, NBYTES, NAME

def gen(bt=256, u=7, depth=7, layout="wave", ld="", st="", mode="exact", order="xf",
        trace=0, xcd=0, nost=0, vgpr=None, sgpr=None, ldpos="before", spin=None, smask=1, only=None,
        amp=0, pt='end', sel=None, selmod=None, base_t=300, rnd=0, prof=0, lst=0):
    wgbytes = bt * 16 * u
    assert NBYTES % wgbytes == 0, (bt, u)
    nwg = NBYTES // wgbytes
    depth = min(depth, u)
    L = []
    a = L.append
    if lst:
        a(HEADER + f"; @launch kernel={NAME} grid=({nwg},1,1) block=({bt},1,1) lds=0")
        a("; @launch kernel=meas_kernel grid=(1,1,1) block=(64,1,1) lds=0")
    else:
        a(HEADER + f"; @launch grid=({nwg},1,1) block=({bt},1,1) lds=0")
    a('.amdgcn_target "amdgcn-amd-amdhsa--gfx950"')
    a(".text")
    a(f".globl {NAME}")
    a(".p2align 8")
    a(f".type {NAME},@function")
    a(f"{NAME}:")
    if trace or spin is not None or amp or prof or lst:
        a("    s_memrealtime s[40:41]")
    a("    s_load_dwordx8 s[4:11], s[0:1], 0      ; x, fx, alpha, out")
    if amp or prof:
        a("    s_load_dwordx2 s[34:35], s[0:1], 32")
    if lst:
        a("    s_load_dwordx2 s[34:35], s[0:1], 40")
    def stamp(name):
        if (amp or prof) and pt == name:
            a("    s_memrealtime s[46:47]")
    TR = 1
    nv = 2
    if trace:
        a("    s_load_dwordx2 s[36:37], s[0:1], 40")
        a(f"    s_mul_i32 s38, s2, {bt//64}")
        a(f"    v_lshrrev_b32 v{TR}, 6, v0")
        a(f"    v_add_u32 v{TR}, s38, v{TR}")
        a(f"    v_lshlrev_b32 v{TR}, 5, v{TR}")
        a("    s_getreg_b32 s39, hwreg(HW_REG_XCC_ID)")
        a("    s_getreg_b32 s52, hwreg(HW_REG_HW_ID)")
    a(f"    s_cmp_ge_u32 s2, {nwg}")
    a("    s_cbranch_scc1 L_end")
    if only is not None:
        a("    s_and_b32 s3, s2, 7")
        a(f"    s_cmp_ge_u32 s3, {only}")
        a("    s_cbranch_scc1 L_end")
    if xcd:
        assert nwg % 8 == 0
        a("    s_and_b32 s3, s2, 7")
        a("    s_lshr_b32 s2, s2, 3")
        a(f"    s_mul_i32 s3, s3, {nwg//8}")
        a("    s_add_u32 s2, s2, s3")
    offs = []
    B = nv
    if layout == "wave":
        a(f"    s_mul_i32 s3, s2, {wgbytes}")
        if u == 1:
            a(f"    v_lshl_add_u32 v{B}, v0, 4, s3")
        else:
            a(f"    v_lshrrev_b32 v{B+1}, 6, v0")
            a(f"    v_and_b32 v{B}, 63, v0")
            a(f"    v_mul_u32_u24 v{B+1}, {1024*u}, v{B+1}")
            a(f"    v_lshl_add_u32 v{B}, v{B}, 4, s3")
            a(f"    v_add_u32 v{B}, v{B}, v{B+1}")
        cur = B
        nv = B + 1
        for i in range(u):
            if i and i % 4 == 0:
                a(f"    v_add_u32 v{nv}, {4096*(i//4)}, v{B}")
                cur = nv
                nv += 1
            offs.append((cur, (i % 4) * 1024))
        nv = max(nv, B + 2)
    elif layout in ("wg", "grid"):
        stride = bt * 16 if layout == "wg" else bt * 16 * nwg
        a(f"    s_mul_i32 s3, s2, {wgbytes if layout == 'wg' else bt*16}")
        a(f"    v_lshl_add_u32 v{B}, v0, 4, s3")
        nv = B + 1
        offs.append((B, 0))
        for i in range(1, u):
            a(f"    v_add_u32 v{nv}, {i*stride}, v{B}")
            offs.append((nv, 0))
            nv += 1
    else:
        raise ValueError(layout)
    base = (nv + 3) // 4 * 4
    nbuf = u
    X = [base + 8 * i for i in range(nbuf)]
    F = [base + 8 * i + 4 for i in range(nbuf)]
    T = base + 8 * nbuf
    MASK = "s26" if smask else "0xffff0000"
    if smask:
        a("    s_mov_b32 s26, 0xffff0000")
    a("    s_waitcnt lgkmcnt(0)")
    stamp('karg')
    if trace:
        a("    s_memrealtime s[42:43]")
    q = []
    def imm(o):
        return f" offset:{o}" if o else ""
    def load(i):
        v, o = offs[i]
        for w in order:
            dst = X[i] if w == "x" else F[i]
            sb = "s[4:5]" if w == "x" else "s[6:7]"
            a(f"    global_load_dwordx4 v[{dst}:{dst+3}], v{v}, {sb}{imm(o)} {ld}".rstrip())
            q.append((w, i))
    def store(i):
        if nost: return
        v, o = offs[i]
        a(f"    global_store_dwordx4 v{v}, v[{X[i]}:{X[i]+3}], s[10:11]{imm(o)} {st}".rstrip())
        q.append(("s", i))
    def wait(tag):
        idx = q.index(tag)
        n = len(q) - 1 - idx
        a(f"    s_waitcnt vmcnt({min(n,63)})")
        del q[:idx + 1]
    for i in range(depth):
        load(i)
        if i == 0:
            a("    s_load_dword s24, s[8:9], 0")
    stamp('ldiss')
    if amp or lst:
        a("    s_cmp_lg_u32 s2, 0")
        a("    s_cbranch_scc1 L_nopub")
        a("    v_cmp_eq_u32 vcc, 0, v0")
        a("    s_and_saveexec_b64 s[32:33], vcc")
        a("    s_cbranch_execz L_nopub2")
        a("    v_mov_b32 v1, s40")
        a("    v_or_b32 v1, 1, v1")
        a("    global_store_dword v0, v1, s[34:35] sc0 sc1")
        a("L_nopub2:")
        a("    s_mov_b64 exec, s[32:33]")
        a("L_nopub:")
    a("    s_waitcnt lgkmcnt(0)")
    stamp('alpha')
    a("    s_lshl_b32 s24, s24, 16")
    a("    s_mov_b32 s25, s24")
    for i in range(u):
        x, f = X[i], F[i]
        first = (order[0], i); last = (order[1], i)
        if mode == "exact":
            if order == "fx":
                wait(first)
            else:
                wait(last)
            if trace and i == 0:
                a("    s_memrealtime s[44:45]")
            if trace and i == u - 1:
                a("    s_memrealtime s[46:47]")
            if i == 0: stamp('d0')
            if i == u - 1: stamp('dN')
            if ldpos == "before" and i + depth < u and order != "fx":
                load(i + depth)
            for j in range(4):
                a(f"    v_lshlrev_b32 v{T+2*j}, 16, v{f+j}")
                a(f"    v_and_b32 v{T+2*j+1}, {MASK}, v{f+j}")
            for j in range(4):
                a(f"    v_pk_mul_f32 v[{T+2*j}:{T+2*j+1}], v[{T+2*j}:{T+2*j+1}], s[24:25]")
            for j in range(4):
                a(f"    v_cvt_pk_bf16_f32 v{f+j}, v{T+2*j}, v{T+2*j+1}")
            for j in range(4):
                a(f"    v_lshlrev_b32 v{T+2*j}, 16, v{f+j}")
                a(f"    v_and_b32 v{T+2*j+1}, {MASK}, v{f+j}")
            if order == "fx":
                wait(last)
                if ldpos == "before" and i + depth < u:
                    load(i + depth)
            for j in range(4):
                a(f"    v_lshlrev_b32 v{T+8+2*j}, 16, v{x+j}")
                a(f"    v_and_b32 v{T+8+2*j+1}, {MASK}, v{x+j}")
            for j in range(4):
                a(f"    v_pk_add_f32 v[{T+2*j}:{T+2*j+1}], v[{T+2*j}:{T+2*j+1}], v[{T+8+2*j}:{T+8+2*j+1}]")
            for j in range(4):
                a(f"    v_cvt_pk_bf16_f32 v{x+j}, v{T+2*j}, v{T+2*j+1}")
        elif mode == "fused":
            wait(last)
            if trace and i == 0:
                a("    s_memrealtime s[44:45]")
            if trace and i == u - 1:
                a("    s_memrealtime s[46:47]")
            if ldpos == "before" and i + depth < u:
                load(i + depth)
            for j in range(4):
                a(f"    v_lshlrev_b32 v{T+2*j}, 16, v{f+j}")
                a(f"    v_and_b32 v{T+2*j+1}, {MASK}, v{f+j}")
                a(f"    v_lshlrev_b32 v{T+8+2*j}, 16, v{x+j}")
                a(f"    v_and_b32 v{T+8+2*j+1}, {MASK}, v{x+j}")
            for j in range(4):
                a(f"    v_pk_fma_f32 v[{T+2*j}:{T+2*j+1}], v[{T+2*j}:{T+2*j+1}], s[24:25], v[{T+8+2*j}:{T+8+2*j+1}]")
            for j in range(4):
                a(f"    v_cvt_pk_bf16_f32 v{x+j}, v{T+2*j}, v{T+2*j+1}")
        store(i)
        if ldpos == "after" and i + depth < u:
            load(i + depth)
    if trace:
        a("    s_memrealtime s[48:49]")
        a("    s_waitcnt vmcnt(0)")
        a("    s_memrealtime s[50:51]")
        a("    s_waitcnt lgkmcnt(0)")
        a("    s_mov_b64 exec, 1")
        for j, sr in enumerate((40, 42, 44, 46, 48, 50, 39, 52)):
            a(f"    v_mov_b32 v{T+j}, s{sr}")
        a(f"    global_store_dwordx4 v{TR}, v[{T}:{T+3}], s[36:37]")
        a(f"    global_store_dwordx4 v{TR}, v[{T+4}:{T+7}], s[36:37] offset:16")
    if prof:
        stamp('stiss')
        a("    s_waitcnt vmcnt(0)")
        stamp('end')
        a("    s_getreg_b32 s37, hwreg(HW_REG_XCC_ID)")
        a("    s_and_b32 s37, s37, 7")
        a("    s_lshl_b32 s37, s37, 2")
        a("    s_waitcnt lgkmcnt(0)")
        a("    s_mov_b64 exec, 1")
        a("    s_not_b32 s38, s40")
        a("    v_mov_b32 v1, s37")
        a("    v_mov_b32 v2, s38")
        a("    v_mov_b32 v3, s46")
        a("    global_atomic_umax v1, v2, s[34:35] sc1")
        a("    global_atomic_umax v1, v3, s[34:35] offset:32 sc1")
    if amp:
        stamp('stiss')
        a("    s_waitcnt vmcnt(0)")
        stamp('end')
        if pt == 'entry':
            a("    s_mov_b32 s46, s40")
        if sel is not None:
            a(f"    s_cmp_lg_u32 s2, {sel}")
            a("    s_cbranch_scc1 L_end")
        if selmod is not None:
            a("    s_and_b32 s38, s2, 7")
            a(f"    s_cmp_lg_u32 s38, {selmod}")
            a("    s_cbranch_scc1 L_end")
        a("    s_load_dword s36, s[34:35], 0")
        a("    s_waitcnt lgkmcnt(0)")
        a("    s_cmp_lg_u32 s36, 0")
        a("    s_cbranch_scc1 L_gotref")
        a("    v_mov_b32 v1, 0")
        a("    s_mov_b32 s38, 0")
        a("L_poll:")
        a("    s_add_u32 s38, s38, 1")
        a("    s_cmp_gt_u32 s38, 200")
        a("    s_cbranch_scc1 L_end")
        a("    s_sleep 4")
        a("    global_load_dword v2, v1, s[34:35] sc0 sc1")
        a("    s_waitcnt vmcnt(0)")
        a("    v_readfirstlane_b32 s36, v2")
        a("    s_cmp_eq_u32 s36, 0")
        a("    s_cbranch_scc1 L_poll")
        a("L_gotref:")
        if pt == 'xcc':
            a("    s_getreg_b32 s37, hwreg(HW_REG_XCC_ID)")
            a("    s_and_b32 s37, s37, 15")
        else:
            a("    s_sub_u32 s37, s46, s36")
        a(f"    s_mul_i32 s37, s37, {amp}")
        a(f"    s_add_u32 s37, s37, {base_t}")
        a("    s_min_i32 s37, s37, 20000")
        a("L_spin2:")
        a("    s_sleep 2")
        a("    s_memrealtime s[30:31]")
        a("    s_waitcnt lgkmcnt(0)")
        a("    s_sub_u32 s30, s30, s36")
        a("    s_cmp_lt_i32 s30, s37")
        a("    s_cbranch_scc1 L_spin2")
    if spin is not None:
        a("    s_waitcnt vmcnt(0)")
        a("L_spin:")
        a("    s_memrealtime s[30:31]")
        a("    s_waitcnt lgkmcnt(0)")
        a("    s_sub_u32 s30, s30, s40")
        a(f"    s_cmp_lt_u32 s30, {spin}")
        a("    s_cbranch_scc1 L_spin")
    a("L_end:")
    a("    s_endpgm")
    if lst:
        a(".globl meas_kernel")
        a(".p2align 8")
        a(".type meas_kernel,@function")
        a("meas_kernel:")
        a("    s_memrealtime s[40:41]")
        a("    s_load_dwordx2 s[34:35], s[0:1], 40")
        a("    s_cmp_ge_u32 s2, 1")
        a("    s_cbranch_scc1 L_mend")
        a("    v_mov_b32 v1, 0")
        a("    s_waitcnt lgkmcnt(0)")
        a("    global_load_dword v2, v1, s[34:35] sc0 sc1")
        a("    s_waitcnt vmcnt(0)")
        a("    v_readfirstlane_b32 s36, v2")
        a("    s_sub_u32 s37, s40, s36")
        a(f"    s_mul_i32 s37, s37, {lst}")
        a("    s_min_u32 s37, s37, 20000")
        a("L_mspin:")
        a("    s_memrealtime s[30:31]")
        a("    s_waitcnt lgkmcnt(0)")
        a("    s_sub_u32 s30, s30, s40")
        a("    s_cmp_lt_u32 s30, s37")
        a("    s_cbranch_scc1 L_mspin")
        a("L_mend:")
        a("    s_endpgm")
    nvg = T + 16
    if vgpr: nvg = max(nvg, vgpr)
    acc = (nvg + 3) // 4 * 4
    a('.section .rodata,"a"')
    a(".p2align 6")
    a(f".amdhsa_kernel {NAME}")
    a(f"  .amdhsa_next_free_vgpr {nvg}")
    a(f"  .amdhsa_next_free_sgpr {sgpr or (56 if (trace or spin is not None or amp or prof or lst) else 32)}")
    a(f"  .amdhsa_accum_offset {acc}")
    a("  .amdhsa_group_segment_fixed_size 0")
    a("  .amdhsa_kernarg_size 48")
    a("  .amdhsa_user_sgpr_count 2")
    a("  .amdhsa_user_sgpr_kernarg_segment_ptr 1")
    a("  .amdhsa_system_sgpr_workgroup_id_x 1")
    a("  .amdhsa_float_denorm_mode_32 3")
    a(".end_amdhsa_kernel")
    if lst:
        a(".p2align 6")
        a(".amdhsa_kernel meas_kernel")
        a("  .amdhsa_next_free_vgpr 8")
        a("  .amdhsa_next_free_sgpr 56")
        a("  .amdhsa_accum_offset 8")
        a("  .amdhsa_group_segment_fixed_size 0")
        a("  .amdhsa_kernarg_size 48")
        a("  .amdhsa_user_sgpr_count 2")
        a("  .amdhsa_user_sgpr_kernarg_segment_ptr 1")
        a("  .amdhsa_system_sgpr_workgroup_id_x 1")
        a(".end_amdhsa_kernel")
    return "\n".join(L) + "\n"

if __name__ == "__main__":
    out = sys.argv[1]
    kw = {}
    for kv in sys.argv[2:]:
        k, v = kv.split("=", 1)
        if k in ("ld", "st"): v = v.replace("+", " ")
        elif v.lstrip("-").isdigit(): v = int(v)
        kw[k] = v
    open(out, "w").write(gen(**kw))
```

```python
import sys, argparse
from gen import HEADER, NBYTES, NAME

def gen(bt=256, u=7, depth=7, layout="wave", ld="", st="", mode="exact", order="xf",
        trace=0, xcd=0, nost=0, vgpr=None, sgpr=None, ldpos="before", spin=None, smask=1, only=None,
        amp=0, pt='end', sel=None, selmod=None, base_t=300, rnd=0, prof=0, lst=0, fl=None, fln=8, flw=1, wb='sc1'):
    wgbytes = bt * 16 * u
    assert NBYTES % wgbytes == 0, (bt, u)
    nwg = NBYTES // wgbytes
    depth = min(depth, u)
    L = []
    a = L.append
    lbt = bt + 64 if fl is not None else bt
    fls = [] if fl is None else [int(c) for c in str(fl)]
    if lst:
        a(HEADER + f"; @launch kernel={NAME} grid=({nwg},1,1) block=({lbt},1,1) lds=0")
        a("; @launch kernel=meas_kernel grid=(1,1,1) block=(64,1,1) lds=0")
    else:
        a(HEADER + f"; @launch grid=({nwg},1,1) block=({lbt},1,1) lds=0")
    a('.amdgcn_target "amdgcn-amd-amdhsa--gfx950"')
    a(".text")
    a(f".globl {NAME}")
    a(".p2align 8")
    a(f".type {NAME},@function")
    a(f"{NAME}:")
    if trace or spin is not None or amp or prof or lst:
        a("    s_memrealtime s[40:41]")
    a("    s_load_dwordx8 s[4:11], s[0:1], 0      ; x, fx, alpha, out")
    if amp or prof:
        a("    s_load_dwordx2 s[34:35], s[0:1], 32")
    if lst:
        a("    s_load_dwordx2 s[34:35], s[0:1], 40")
    def stamp(name):
        if (amp or prof) and pt == name:
            a("    s_memrealtime s[46:47]")
    TR = 1
    nv = 2
    if trace:
        a("    s_load_dwordx2 s[36:37], s[0:1], 40")
        a(f"    s_mul_i32 s38, s2, {lbt//64}")
        a(f"    v_lshrrev_b32 v{TR}, 6, v0")
        a(f"    v_add_u32 v{TR}, s38, v{TR}")
        a(f"    v_lshlrev_b32 v{TR}, 5, v{TR}")
        a("    s_getreg_b32 s39, hwreg(HW_REG_XCC_ID)")
        a("    s_getreg_b32 s52, hwreg(HW_REG_HW_ID)")
    a(f"    s_cmp_ge_u32 s2, {nwg}")
    a("    s_cbranch_scc1 L_end")
    if fl is not None:
        a("    v_readfirstlane_b32 s3, v0")
        a(f"    s_cmp_ge_u32 s3, {bt}")
        a("    s_cbranch_scc1 L_helper")
    if only is not None:
        a("    s_and_b32 s3, s2, 7")
        a(f"    s_cmp_ge_u32 s3, {only}")
        a("    s_cbranch_scc1 L_end")
    if xcd:
        assert nwg % 8 == 0
        a("    s_and_b32 s3, s2, 7")
        a("    s_lshr_b32 s2, s2, 3")
        a(f"    s_mul_i32 s3, s3, {nwg//8}")
        a("    s_add_u32 s2, s2, s3")
    offs = []
    B = nv
    if layout == "wave":
        a(f"    s_mul_i32 s3, s2, {wgbytes}")
        if u == 1:
            a(f"    v_lshl_add_u32 v{B}, v0, 4, s3")
        else:
            a(f"    v_lshrrev_b32 v{B+1}, 6, v0")
            a(f"    v_and_b32 v{B}, 63, v0")
            a(f"    v_mul_u32_u24 v{B+1}, {1024*u}, v{B+1}")
            a(f"    v_lshl_add_u32 v{B}, v{B}, 4, s3")
            a(f"    v_add_u32 v{B}, v{B}, v{B+1}")
        cur = B
        nv = B + 1
        for i in range(u):
            if i and i % 4 == 0:
                a(f"    v_add_u32 v{nv}, {4096*(i//4)}, v{B}")
                cur = nv
                nv += 1
            offs.append((cur, (i % 4) * 1024))
        nv = max(nv, B + 2)
    elif layout in ("wg", "grid"):
        stride = bt * 16 if layout == "wg" else bt * 16 * nwg
        a(f"    s_mul_i32 s3, s2, {wgbytes if layout == 'wg' else bt*16}")
        a(f"    v_lshl_add_u32 v{B}, v0, 4, s3")
        nv = B + 1
        offs.append((B, 0))
        for i in range(1, u):
            a(f"    v_add_u32 v{nv}, {i*stride}, v{B}")
            offs.append((nv, 0))
            nv += 1
    else:
        raise ValueError(layout)
    base = (nv + 3) // 4 * 4
    nbuf = u
    X = [base + 8 * i for i in range(nbuf)]
    F = [base + 8 * i + 4 for i in range(nbuf)]
    T = base + 8 * nbuf
    MASK = "s26" if smask else "0xffff0000"
    if smask:
        a("    s_mov_b32 s26, 0xffff0000")
    a("    s_waitcnt lgkmcnt(0)")
    stamp('karg')
    if trace:
        a("    s_memrealtime s[42:43]")
    q = []
    def imm(o):
        return f" offset:{o}" if o else ""
    def load(i):
        v, o = offs[i]
        for w in order:
            dst = X[i] if w == "x" else F[i]
            sb = "s[4:5]" if w == "x" else "s[6:7]"
            a(f"    global_load_dwordx4 v[{dst}:{dst+3}], v{v}, {sb}{imm(o)} {ld}".rstrip())
            q.append((w, i))
    def store(i):
        if nost: return
        v, o = offs[i]
        a(f"    global_store_dwordx4 v{v}, v[{X[i]}:{X[i]+3}], s[10:11]{imm(o)} {st}".rstrip())
        q.append(("s", i))
    def wait(tag):
        idx = q.index(tag)
        n = len(q) - 1 - idx
        a(f"    s_waitcnt vmcnt({min(n,63)})")
        del q[:idx + 1]
    for i in range(depth):
        load(i)
        if i == 0:
            a("    s_load_dword s24, s[8:9], 0")
    stamp('ldiss')
    if amp or lst:
        a("    s_cmp_lg_u32 s2, 0")
        a("    s_cbranch_scc1 L_nopub")
        a("    v_cmp_eq_u32 vcc, 0, v0")
        a("    s_and_saveexec_b64 s[32:33], vcc")
        a("    s_cbranch_execz L_nopub2")
        a("    v_mov_b32 v1, s40")
        a("    v_or_b32 v1, 1, v1")
        a("    global_store_dword v0, v1, s[34:35] sc0 sc1")
        a("L_nopub2:")
        a("    s_mov_b64 exec, s[32:33]")
        a("L_nopub:")
    a("    s_waitcnt lgkmcnt(0)")
    stamp('alpha')
    a("    s_lshl_b32 s24, s24, 16")
    a("    s_mov_b32 s25, s24")
    for i in range(u):
        x, f = X[i], F[i]
        first = (order[0], i); last = (order[1], i)
        if mode == "exact":
            if order == "fx":
                wait(first)
            else:
                wait(last)
            if trace and i == 0:
                a("    s_memrealtime s[44:45]")
            if trace and i == u - 1:
                a("    s_memrealtime s[46:47]")
            if i == 0: stamp('d0')
            if i == u - 1: stamp('dN')
            if ldpos == "before" and i + depth < u and order != "fx":
                load(i + depth)
            for j in range(4):
                a(f"    v_lshlrev_b32 v{T+2*j}, 16, v{f+j}")
                a(f"    v_and_b32 v{T+2*j+1}, {MASK}, v{f+j}")
            for j in range(4):
                a(f"    v_pk_mul_f32 v[{T+2*j}:{T+2*j+1}], v[{T+2*j}:{T+2*j+1}], s[24:25]")
            for j in range(4):
                a(f"    v_cvt_pk_bf16_f32 v{f+j}, v{T+2*j}, v{T+2*j+1}")
            for j in range(4):
                a(f"    v_lshlrev_b32 v{T+2*j}, 16, v{f+j}")
                a(f"    v_and_b32 v{T+2*j+1}, {MASK}, v{f+j}")
            if order == "fx":
                wait(last)
                if ldpos == "before" and i + depth < u:
                    load(i + depth)
            for j in range(4):
                a(f"    v_lshlrev_b32 v{T+8+2*j}, 16, v{x+j}")
                a(f"    v_and_b32 v{T+8+2*j+1}, {MASK}, v{x+j}")
            for j in range(4):
                a(f"    v_pk_add_f32 v[{T+2*j}:{T+2*j+1}], v[{T+2*j}:{T+2*j+1}], v[{T+8+2*j}:{T+8+2*j+1}]")
            for j in range(4):
                a(f"    v_cvt_pk_bf16_f32 v{x+j}, v{T+2*j}, v{T+2*j+1}")
        elif mode == "fused":
            wait(last)
            if trace and i == 0:
                a("    s_memrealtime s[44:45]")
            if trace and i == u - 1:
                a("    s_memrealtime s[46:47]")
            if ldpos == "before" and i + depth < u:
                load(i + depth)
            for j in range(4):
                a(f"    v_lshlrev_b32 v{T+2*j}, 16, v{f+j}")
                a(f"    v_and_b32 v{T+2*j+1}, {MASK}, v{f+j}")
                a(f"    v_lshlrev_b32 v{T+8+2*j}, 16, v{x+j}")
                a(f"    v_and_b32 v{T+8+2*j+1}, {MASK}, v{x+j}")
            for j in range(4):
                a(f"    v_pk_fma_f32 v[{T+2*j}:{T+2*j+1}], v[{T+2*j}:{T+2*j+1}], s[24:25], v[{T+8+2*j}:{T+8+2*j+1}]")
            for j in range(4):
                a(f"    v_cvt_pk_bf16_f32 v{x+j}, v{T+2*j}, v{T+2*j+1}")
        store(i)
        if i in fls:
            a(f"    s_cmp_ge_u32 s2, {fln}")
            a(f"    s_cbranch_scc1 L_nobar{i}")
            a("    s_barrier")
            a(f"L_nobar{i}:")
        if ldpos == "after" and i + depth < u:
            load(i + depth)
    if trace:
        a("    s_memrealtime s[48:49]")
        a("    s_waitcnt vmcnt(0)")
        a("    s_memrealtime s[50:51]")
        a("    s_waitcnt lgkmcnt(0)")
        a("    s_mov_b64 exec, 1")
        for j, sr in enumerate((40, 42, 44, 46, 48, 50, 39, 52)):
            a(f"    v_mov_b32 v{T+j}, s{sr}")
        a(f"    global_store_dwordx4 v{TR}, v[{T}:{T+3}], s[36:37]")
        a(f"    global_store_dwordx4 v{TR}, v[{T+4}:{T+7}], s[36:37] offset:16")
    if prof:
        stamp('stiss')
        a("    s_waitcnt vmcnt(0)")
        stamp('end')
        a("    s_getreg_b32 s37, hwreg(HW_REG_XCC_ID)")
        a("    s_and_b32 s37, s37, 7")
        a("    s_lshl_b32 s37, s37, 2")
        a("    s_waitcnt lgkmcnt(0)")
        a("    s_mov_b64 exec, 1")
        a("    s_not_b32 s38, s40")
        a("    v_mov_b32 v1, s37")
        a("    v_mov_b32 v2, s38")
        a("    v_mov_b32 v3, s46")
        a("    global_atomic_umax v1, v2, s[34:35] sc1")
        a("    global_atomic_umax v1, v3, s[34:35] offset:32 sc1")
    if amp:
        stamp('stiss')
        a("    s_waitcnt vmcnt(0)")
        stamp('end')
        if pt == 'entry':
            a("    s_mov_b32 s46, s40")
        if sel is not None:
            a(f"    s_cmp_lg_u32 s2, {sel}")
            a("    s_cbranch_scc1 L_end")
        if selmod is not None:
            a("    s_and_b32 s38, s2, 7")
            a(f"    s_cmp_lg_u32 s38, {selmod}")
            a("    s_cbranch_scc1 L_end")
        a("    s_load_dword s36, s[34:35], 0")
        a("    s_waitcnt lgkmcnt(0)")
        a("    s_cmp_lg_u32 s36, 0")
        a("    s_cbranch_scc1 L_gotref")
        a("    v_mov_b32 v1, 0")
        a("    s_mov_b32 s38, 0")
        a("L_poll:")
        a("    s_add_u32 s38, s38, 1")
        a("    s_cmp_gt_u32 s38, 200")
        a("    s_cbranch_scc1 L_end")
        a("    s_sleep 4")
        a("    global_load_dword v2, v1, s[34:35] sc0 sc1")
        a("    s_waitcnt vmcnt(0)")
        a("    v_readfirstlane_b32 s36, v2")
        a("    s_cmp_eq_u32 s36, 0")
        a("    s_cbranch_scc1 L_poll")
        a("L_gotref:")
        if pt == 'xcc':
            a("    s_getreg_b32 s37, hwreg(HW_REG_XCC_ID)")
            a("    s_and_b32 s37, s37, 15")
        else:
            a("    s_sub_u32 s37, s46, s36")
        a(f"    s_mul_i32 s37, s37, {amp}")
        a(f"    s_add_u32 s37, s37, {base_t}")
        a("    s_min_i32 s37, s37, 20000")
        a("L_spin2:")
        a("    s_sleep 2")
        a("    s_memrealtime s[30:31]")
        a("    s_waitcnt lgkmcnt(0)")
        a("    s_sub_u32 s30, s30, s36")
        a("    s_cmp_lt_i32 s30, s37")
        a("    s_cbranch_scc1 L_spin2")
    if spin is not None:
        a("    s_waitcnt vmcnt(0)")
        a("L_spin:")
        a("    s_memrealtime s[30:31]")
        a("    s_waitcnt lgkmcnt(0)")
        a("    s_sub_u32 s30, s30, s40")
        a(f"    s_cmp_lt_u32 s30, {spin}")
        a("    s_cbranch_scc1 L_spin")
    a("L_end:")
    a("    s_endpgm")
    if fl is not None:
        a("L_helper:")
        a(f"    s_cmp_ge_u32 s2, {fln}")
        a("    s_cbranch_scc1 L_hend")
        for i in fls:
            a("    s_barrier")
            a(f"    buffer_wbl2 {wb.replace('+', ' ')}".rstrip())
        if flw:
            a("    s_waitcnt vmcnt(0)")
        a("L_hend:")
        a("    s_endpgm")
    if lst:
        a(".globl meas_kernel")
        a(".p2align 8")
        a(".type meas_kernel,@function")
        a("meas_kernel:")
        a("    s_memrealtime s[40:41]")
        a("    s_load_dwordx2 s[34:35], s[0:1], 40")
        a("    s_cmp_ge_u32 s2, 1")
        a("    s_cbranch_scc1 L_mend")
        a("    v_mov_b32 v1, 0")
        a("    s_waitcnt lgkmcnt(0)")
        a("    global_load_dword v2, v1, s[34:35] sc0 sc1")
        a("    s_waitcnt vmcnt(0)")
        a("    v_readfirstlane_b32 s36, v2")
        a("    s_sub_u32 s37, s40, s36")
        a(f"    s_mul_i32 s37, s37, {lst}")
        a("    s_min_u32 s37, s37, 20000")
        a("L_mspin:")
        a("    s_memrealtime s[30:31]")
        a("    s_waitcnt lgkmcnt(0)")
        a("    s_sub_u32 s30, s30, s40")
        a("    s_cmp_lt_u32 s30, s37")
        a("    s_cbranch_scc1 L_mspin")
        a("L_mend:")
        a("    s_endpgm")
    nvg = T + 16
    if vgpr: nvg = max(nvg, vgpr)
    acc = (nvg + 3) // 4 * 4
    a('.section .rodata,"a"')
    a(".p2align 6")
    a(f".amdhsa_kernel {NAME}")
    a(f"  .amdhsa_next_free_vgpr {nvg}")
    a(f"  .amdhsa_next_free_sgpr {sgpr or (56 if (trace or spin is not None or amp or prof or lst) else 32)}")
    a(f"  .amdhsa_accum_offset {acc}")
    a("  .amdhsa_group_segment_fixed_size 0")
    a("  .amdhsa_kernarg_size 48")
    a("  .amdhsa_user_sgpr_count 2")
    a("  .amdhsa_user_sgpr_kernarg_segment_ptr 1")
    a("  .amdhsa_system_sgpr_workgroup_id_x 1")
    a("  .amdhsa_float_denorm_mode_32 3")
    a(".end_amdhsa_kernel")
    if lst:
        a(".p2align 6")
        a(".amdhsa_kernel meas_kernel")
        a("  .amdhsa_next_free_vgpr 8")
        a("  .amdhsa_next_free_sgpr 56")
        a("  .amdhsa_accum_offset 8")
        a("  .amdhsa_group_segment_fixed_size 0")
        a("  .amdhsa_kernarg_size 48")
        a("  .amdhsa_user_sgpr_count 2")
        a("  .amdhsa_user_sgpr_kernarg_segment_ptr 1")
        a("  .amdhsa_system_sgpr_workgroup_id_x 1")
        a(".end_amdhsa_kernel")
    return "\n".join(L) + "\n"

if __name__ == "__main__":
    out = sys.argv[1]
    kw = {}
    for kv in sys.argv[2:]:
        k, v = kv.split("=", 1)
        if k in ("ld", "st"): v = v.replace("+", " ")
        elif v.lstrip("-").isdigit(): v = int(v)
        kw[k] = v
    open(out, "w").write(gen(**kw))
```

```python
import sys, argparse
from gen import HEADER, NBYTES, NAME

def gen(bt=256, u=7, depth=7, layout="wave", ld="", st="", mode="exact", order="xf",
        trace=0, xcd=0, nost=0, vgpr=None, sgpr=None, ldpos="before", spin=None, smask=1, only=None,
        amp=0, pt='end', sel=None, selmod=None, base_t=300, rnd=0, prof=0, lst=0, fl=None, fln=8, flw=1, wb='sc1', stw=None, cvt0=0):
    wgbytes = bt * 16 * u
    assert NBYTES % wgbytes == 0, (bt, u)
    nwg = NBYTES // wgbytes
    depth = min(depth, u)
    L = []
    a = L.append
    lbt = bt + 64 if fl is not None else bt
    fls = [] if fl is None else [int(c) for c in str(fl)]
    if lst:
        a(HEADER + f"; @launch kernel={NAME} grid=({nwg},1,1) block=({lbt},1,1) lds=0")
        a("; @launch kernel=meas_kernel grid=(1,1,1) block=(64,1,1) lds=0")
    else:
        a(HEADER + f"; @launch grid=({nwg},1,1) block=({lbt},1,1) lds=0")
    a('.amdgcn_target "amdgcn-amd-amdhsa--gfx950"')
    a(".text")
    a(f".globl {NAME}")
    a(".p2align 8")
    a(f".type {NAME},@function")
    a(f"{NAME}:")
    if trace or spin is not None or amp or prof or lst:
        a("    s_memrealtime s[40:41]")
    a("    s_load_dwordx8 s[4:11], s[0:1], 0      ; x, fx, alpha, out")
    if amp or prof:
        a("    s_load_dwordx2 s[34:35], s[0:1], 32")
    if lst:
        a("    s_load_dwordx2 s[34:35], s[0:1], 40")
    def stamp(name):
        if (amp or prof) and pt == name:
            a("    s_memrealtime s[46:47]")
    TR = 1
    nv = 2
    if trace:
        a("    s_load_dwordx2 s[36:37], s[0:1], 40")
        a(f"    s_mul_i32 s38, s2, {lbt//64}")
        a(f"    v_lshrrev_b32 v{TR}, 6, v0")
        a(f"    v_add_u32 v{TR}, s38, v{TR}")
        a(f"    v_lshlrev_b32 v{TR}, 5, v{TR}")
        a("    s_getreg_b32 s39, hwreg(HW_REG_XCC_ID)")
        a("    s_getreg_b32 s52, hwreg(HW_REG_HW_ID)")
    a(f"    s_cmp_ge_u32 s2, {nwg}")
    a("    s_cbranch_scc1 L_end")
    if fl is not None:
        a("    v_readfirstlane_b32 s3, v0")
        a(f"    s_cmp_ge_u32 s3, {bt}")
        a("    s_cbranch_scc1 L_helper")
    if only is not None:
        a("    s_and_b32 s3, s2, 7")
        a(f"    s_cmp_ge_u32 s3, {only}")
        a("    s_cbranch_scc1 L_end")
    if xcd:
        assert nwg % 8 == 0
        a("    s_and_b32 s3, s2, 7")
        a("    s_lshr_b32 s2, s2, 3")
        a(f"    s_mul_i32 s3, s3, {nwg//8}")
        a("    s_add_u32 s2, s2, s3")
    offs = []
    B = nv
    if layout == "wave":
        a(f"    s_mul_i32 s3, s2, {wgbytes}")
        if u == 1:
            a(f"    v_lshl_add_u32 v{B}, v0, 4, s3")
        else:
            a(f"    v_lshrrev_b32 v{B+1}, 6, v0")
            a(f"    v_and_b32 v{B}, 63, v0")
            a(f"    v_mul_u32_u24 v{B+1}, {1024*u}, v{B+1}")
            a(f"    v_lshl_add_u32 v{B}, v{B}, 4, s3")
            a(f"    v_add_u32 v{B}, v{B}, v{B+1}")
        cur = B
        nv = B + 1
        for i in range(u):
            if i and i % 4 == 0:
                a(f"    v_add_u32 v{nv}, {4096*(i//4)}, v{B}")
                cur = nv
                nv += 1
            offs.append((cur, (i % 4) * 1024))
        nv = max(nv, B + 2)
    elif layout in ("wg", "grid"):
        stride = bt * 16 if layout == "wg" else bt * 16 * nwg
        a(f"    s_mul_i32 s3, s2, {wgbytes if layout == 'wg' else bt*16}")
        a(f"    v_lshl_add_u32 v{B}, v0, 4, s3")
        nv = B + 1
        offs.append((B, 0))
        for i in range(1, u):
            a(f"    v_add_u32 v{nv}, {i*stride}, v{B}")
            offs.append((nv, 0))
            nv += 1
    else:
        raise ValueError(layout)
    base = (nv + 3) // 4 * 4
    nbuf = u
    X = [base + 8 * i for i in range(nbuf)]
    F = [base + 8 * i + 4 for i in range(nbuf)]
    T = base + 8 * nbuf
    MASK = "s26" if smask else "0xffff0000"
    if smask:
        a("    s_mov_b32 s26, 0xffff0000")
    a("    s_waitcnt lgkmcnt(0)")
    stamp('karg')
    if trace:
        a("    s_memrealtime s[42:43]")
    q = []
    def imm(o):
        return f" offset:{o}" if o else ""
    def load(i):
        v, o = offs[i]
        for w in order:
            dst = X[i] if w == "x" else F[i]
            sb = "s[4:5]" if w == "x" else "s[6:7]"
            a(f"    global_load_dwordx4 v[{dst}:{dst+3}], v{v}, {sb}{imm(o)} {ld}".rstrip())
            q.append((w, i))
    def store(i):
        if nost: return
        v, o = offs[i]
        sf = st if (stw is None or str(i) in str(stw)) else ""
        a(f"    global_store_dwordx4 v{v}, v[{X[i]}:{X[i]+3}], s[10:11]{imm(o)} {sf}".rstrip())
        q.append(("s", i))
    def wait(tag):
        idx = q.index(tag)
        n = len(q) - 1 - idx
        a(f"    s_waitcnt vmcnt({min(n,63)})")
        del q[:idx + 1]
    for i in range(depth):
        load(i)
        if i == 0:
            a("    s_load_dword s24, s[8:9], 0")
    stamp('ldiss')
    if amp or lst:
        a("    s_cmp_lg_u32 s2, 0")
        a("    s_cbranch_scc1 L_nopub")
        a("    v_cmp_eq_u32 vcc, 0, v0")
        a("    s_and_saveexec_b64 s[32:33], vcc")
        a("    s_cbranch_execz L_nopub2")
        a("    v_mov_b32 v1, s40")
        a("    v_or_b32 v1, 1, v1")
        a("    global_store_dword v0, v1, s[34:35] sc0 sc1")
        a("L_nopub2:")
        a("    s_mov_b64 exec, s[32:33]")
        a("L_nopub:")
    a("    s_waitcnt lgkmcnt(0)")
    stamp('alpha')
    a("    s_lshl_b32 s24, s24, 16")
    a("    s_mov_b32 s25, s24")
    for i in range(u):
        x, f = X[i], F[i]
        first = (order[0], i); last = (order[1], i)
        if mode == "exact":
            if order == "fx":
                wait(first)
            else:
                wait(last)
            if trace and i == 0:
                a("    s_memrealtime s[44:45]")
            if trace and i == u - 1:
                a("    s_memrealtime s[46:47]")
            if i == 0: stamp('d0')
            if i == u - 1: stamp('dN')
            if ldpos == "before" and i + depth < u and order != "fx":
                load(i + depth)
            for j in range(4):
                a(f"    v_lshlrev_b32 v{T+2*j}, 16, v{f+j}")
                a(f"    v_and_b32 v{T+2*j+1}, {MASK}, v{f+j}")
            for j in range(4):
                a(f"    v_pk_mul_f32 v[{T+2*j}:{T+2*j+1}], v[{T+2*j}:{T+2*j+1}], s[24:25]")
            if cvt0:
                for j in range(8):
                    a(f"    v_cvt_pk_bf16_f32 v{T+j}, 0, v{T+j}")
            else:
                for j in range(4):
                    a(f"    v_cvt_pk_bf16_f32 v{f+j}, v{T+2*j}, v{T+2*j+1}")
                for j in range(4):
                    a(f"    v_lshlrev_b32 v{T+2*j}, 16, v{f+j}")
                    a(f"    v_and_b32 v{T+2*j+1}, {MASK}, v{f+j}")
            if order == "fx":
                wait(last)
                if ldpos == "before" and i + depth < u:
                    load(i + depth)
            for j in range(4):
                a(f"    v_lshlrev_b32 v{T+8+2*j}, 16, v{x+j}")
                a(f"    v_and_b32 v{T+8+2*j+1}, {MASK}, v{x+j}")
            for j in range(4):
                a(f"    v_pk_add_f32 v[{T+2*j}:{T+2*j+1}], v[{T+2*j}:{T+2*j+1}], v[{T+8+2*j}:{T+8+2*j+1}]")
            for j in range(4):
                a(f"    v_cvt_pk_bf16_f32 v{x+j}, v{T+2*j}, v{T+2*j+1}")
        elif mode == "fused":
            wait(last)
            if trace and i == 0:
                a("    s_memrealtime s[44:45]")
            if trace and i == u - 1:
                a("    s_memrealtime s[46:47]")
            if ldpos == "before" and i + depth < u:
                load(i + depth)
            for j in range(4):
                a(f"    v_lshlrev_b32 v{T+2*j}, 16, v{f+j}")
                a(f"    v_and_b32 v{T+2*j+1}, {MASK}, v{f+j}")
                a(f"    v_lshlrev_b32 v{T+8+2*j}, 16, v{x+j}")
                a(f"    v_and_b32 v{T+8+2*j+1}, {MASK}, v{x+j}")
            for j in range(4):
                a(f"    v_pk_fma_f32 v[{T+2*j}:{T+2*j+1}], v[{T+2*j}:{T+2*j+1}], s[24:25], v[{T+8+2*j}:{T+8+2*j+1}]")
            for j in range(4):
                a(f"    v_cvt_pk_bf16_f32 v{x+j}, v{T+2*j}, v{T+2*j+1}")
        store(i)
        if i in fls:
            a(f"    s_cmp_ge_u32 s2, {fln}")
            a(f"    s_cbranch_scc1 L_nobar{i}")
            a("    s_barrier")
            a(f"L_nobar{i}:")
        if ldpos == "after" and i + depth < u:
            load(i + depth)
    if trace:
        a("    s_memrealtime s[48:49]")
        a("    s_waitcnt vmcnt(0)")
        a("    s_memrealtime s[50:51]")
        a("    s_waitcnt lgkmcnt(0)")
        a("    s_mov_b64 exec, 1")
        for j, sr in enumerate((40, 42, 44, 46, 48, 50, 39, 52)):
            a(f"    v_mov_b32 v{T+j}, s{sr}")
        a(f"    global_store_dwordx4 v{TR}, v[{T}:{T+3}], s[36:37]")
        a(f"    global_store_dwordx4 v{TR}, v[{T+4}:{T+7}], s[36:37] offset:16")
    if prof:
        stamp('stiss')
        a("    s_waitcnt vmcnt(0)")
        stamp('end')
        a("    s_getreg_b32 s37, hwreg(HW_REG_XCC_ID)")
        a("    s_and_b32 s37, s37, 7")
        a("    s_lshl_b32 s37, s37, 2")
        a("    s_waitcnt lgkmcnt(0)")
        a("    s_mov_b64 exec, 1")
        a("    s_not_b32 s38, s40")
        a("    v_mov_b32 v1, s37")
        a("    v_mov_b32 v2, s38")
        a("    v_mov_b32 v3, s46")
        a("    global_atomic_umax v1, v2, s[34:35] sc1")
        a("    global_atomic_umax v1, v3, s[34:35] offset:32 sc1")
    if amp:
        stamp('stiss')
        a("    s_waitcnt vmcnt(0)")
        stamp('end')
        if pt == 'entry':
            a("    s_mov_b32 s46, s40")
        if sel is not None:
            a(f"    s_cmp_lg_u32 s2, {sel}")
            a("    s_cbranch_scc1 L_end")
        if selmod is not None:
            a("    s_and_b32 s38, s2, 7")
            a(f"    s_cmp_lg_u32 s38, {selmod}")
            a("    s_cbranch_scc1 L_end")
        a("    s_load_dword s36, s[34:35], 0")
        a("    s_waitcnt lgkmcnt(0)")
        a("    s_cmp_lg_u32 s36, 0")
        a("    s_cbranch_scc1 L_gotref")
        a("    v_mov_b32 v1, 0")
        a("    s_mov_b32 s38, 0")
        a("L_poll:")
        a("    s_add_u32 s38, s38, 1")
        a("    s_cmp_gt_u32 s38, 200")
        a("    s_cbranch_scc1 L_end")
        a("    s_sleep 4")
        a("    global_load_dword v2, v1, s[34:35] sc0 sc1")
        a("    s_waitcnt vmcnt(0)")
        a("    v_readfirstlane_b32 s36, v2")
        a("    s_cmp_eq_u32 s36, 0")
        a("    s_cbranch_scc1 L_poll")
        a("L_gotref:")
        if pt == 'xcc':
            a("    s_getreg_b32 s37, hwreg(HW_REG_XCC_ID)")
            a("    s_and_b32 s37, s37, 15")
        else:
            a("    s_sub_u32 s37, s46, s36")
        a(f"    s_mul_i32 s37, s37, {amp}")
        a(f"    s_add_u32 s37, s37, {base_t}")
        a("    s_min_i32 s37, s37, 20000")
        a("L_spin2:")
        a("    s_sleep 2")
        a("    s_memrealtime s[30:31]")
        a("    s_waitcnt lgkmcnt(0)")
        a("    s_sub_u32 s30, s30, s36")
        a("    s_cmp_lt_i32 s30, s37")
        a("    s_cbranch_scc1 L_spin2")
    if spin is not None:
        a("    s_waitcnt vmcnt(0)")
        a("L_spin:")
        a("    s_memrealtime s[30:31]")
        a("    s_waitcnt lgkmcnt(0)")
        a("    s_sub_u32 s30, s30, s40")
        a(f"    s_cmp_lt_u32 s30, {spin}")
        a("    s_cbranch_scc1 L_spin")
    a("L_end:")
    a("    s_endpgm")
    if fl is not None:
        a("L_helper:")
        a(f"    s_cmp_ge_u32 s2, {fln}")
        a("    s_cbranch_scc1 L_hend")
        for i in fls:
            a("    s_barrier")
            a(f"    buffer_wbl2 {wb.replace('+', ' ')}".rstrip())
        if flw:
            a("    s_waitcnt vmcnt(0)")
        a("L_hend:")
        a("    s_endpgm")
    if lst:
        a(".globl meas_kernel")
        a(".p2align 8")
        a(".type meas_kernel,@function")
        a("meas_kernel:")
        a("    s_memrealtime s[40:41]")
        a("    s_load_dwordx2 s[34:35], s[0:1], 40")
        a("    s_cmp_ge_u32 s2, 1")
        a("    s_cbranch_scc1 L_mend")
        a("    v_mov_b32 v1, 0")
        a("    s_waitcnt lgkmcnt(0)")
        a("    global_load_dword v2, v1, s[34:35] sc0 sc1")
        a("    s_waitcnt vmcnt(0)")
        a("    v_readfirstlane_b32 s36, v2")
        a("    s_sub_u32 s37, s40, s36")
        a(f"    s_mul_i32 s37, s37, {lst}")
        a("    s_min_u32 s37, s37, 20000")
        a("L_mspin:")
        a("    s_memrealtime s[30:31]")
        a("    s_waitcnt lgkmcnt(0)")
        a("    s_sub_u32 s30, s30, s40")
        a("    s_cmp_lt_u32 s30, s37")
        a("    s_cbranch_scc1 L_mspin")
        a("L_mend:")
        a("    s_endpgm")
    nvg = T + 16
    if vgpr: nvg = max(nvg, vgpr)
    acc = (nvg + 3) // 4 * 4
    a('.section .rodata,"a"')
    a(".p2align 6")
    a(f".amdhsa_kernel {NAME}")
    a(f"  .amdhsa_next_free_vgpr {nvg}")
    a(f"  .amdhsa_next_free_sgpr {sgpr or (56 if (trace or spin is not None or amp or prof or lst) else 32)}")
    a(f"  .amdhsa_accum_offset {acc}")
    a("  .amdhsa_group_segment_fixed_size 0")
    a("  .amdhsa_kernarg_size 48")
    a("  .amdhsa_user_sgpr_count 2")
    a("  .amdhsa_user_sgpr_kernarg_segment_ptr 1")
    a("  .amdhsa_system_sgpr_workgroup_id_x 1")
    a("  .amdhsa_float_denorm_mode_32 3")
    a(".end_amdhsa_kernel")
    if lst:
        a(".p2align 6")
        a(".amdhsa_kernel meas_kernel")
        a("  .amdhsa_next_free_vgpr 8")
        a("  .amdhsa_next_free_sgpr 56")
        a("  .amdhsa_accum_offset 8")
        a("  .amdhsa_group_segment_fixed_size 0")
        a("  .amdhsa_kernarg_size 48")
        a("  .amdhsa_user_sgpr_count 2")
        a("  .amdhsa_user_sgpr_kernarg_segment_ptr 1")
        a("  .amdhsa_system_sgpr_workgroup_id_x 1")
        a(".end_amdhsa_kernel")
    return "\n".join(L) + "\n"

if __name__ == "__main__":
    out = sys.argv[1]
    kw = {}
    for kv in sys.argv[2:]:
        k, v = kv.split("=", 1)
        if k in ("ld", "st"): v = v.replace("+", " ")
        elif v.lstrip("-").isdigit(): v = int(v)
        kw[k] = v
    open(out, "w").write(gen(**kw))
```

```python
import sys, argparse
from gen import HEADER, NBYTES, NAME

def gen(bt=256, u=7, depth=7, layout="wave", ld="", st="", mode="exact", order="xf",
        trace=0, xcd=0, nost=0, vgpr=None, sgpr=None, ldpos="before", spin=None, smask=1, only=None,
        amp=0, pt='end', sel=None, selmod=None, base_t=300, rnd=0, prof=0, lst=0, fl=None, fln=8, flw=1, wb='sc1', stw=None, cvt0=0, stdelay=0, touch=0):
    wgbytes = bt * 16 * u
    assert NBYTES % wgbytes == 0, (bt, u)
    nwg = NBYTES // wgbytes
    depth = min(depth, u)
    L = []
    a = L.append
    lbt = bt + 64 if fl is not None else bt
    fls = [] if fl is None else [int(c) for c in str(fl)]
    if lst:
        a(HEADER + f"; @launch kernel={NAME} grid=({nwg},1,1) block=({lbt},1,1) lds=0")
        a("; @launch kernel=meas_kernel grid=(1,1,1) block=(64,1,1) lds=0")
    else:
        a(HEADER + f"; @launch grid=({nwg},1,1) block=({lbt},1,1) lds=0")
    a('.amdgcn_target "amdgcn-amd-amdhsa--gfx950"')
    a(".text")
    a(f".globl {NAME}")
    a(".p2align 8")
    a(f".type {NAME},@function")
    a(f"{NAME}:")
    if trace or spin is not None or amp or prof or lst:
        a("    s_memrealtime s[40:41]")
    a("    s_load_dwordx8 s[4:11], s[0:1], 0      ; x, fx, alpha, out")
    if amp or prof:
        a("    s_load_dwordx2 s[34:35], s[0:1], 32")
    if lst:
        a("    s_load_dwordx2 s[34:35], s[0:1], 40")
    def stamp(name):
        if (amp or prof) and pt == name:
            a("    s_memrealtime s[46:47]")
    TR = 1
    nv = 2
    if trace:
        a("    s_load_dwordx2 s[36:37], s[0:1], 40")
        a(f"    s_mul_i32 s38, s2, {lbt//64}")
        a(f"    v_lshrrev_b32 v{TR}, 6, v0")
        a(f"    v_add_u32 v{TR}, s38, v{TR}")
        a(f"    v_lshlrev_b32 v{TR}, 5, v{TR}")
        a("    s_getreg_b32 s39, hwreg(HW_REG_XCC_ID)")
        a("    s_getreg_b32 s52, hwreg(HW_REG_HW_ID)")
    a(f"    s_cmp_ge_u32 s2, {nwg}")
    a("    s_cbranch_scc1 L_end")
    if fl is not None:
        a("    v_readfirstlane_b32 s3, v0")
        a(f"    s_cmp_ge_u32 s3, {bt}")
        a("    s_cbranch_scc1 L_helper")
    if only is not None:
        a("    s_and_b32 s3, s2, 7")
        a(f"    s_cmp_ge_u32 s3, {only}")
        a("    s_cbranch_scc1 L_end")
    if xcd:
        assert nwg % 8 == 0
        a("    s_and_b32 s3, s2, 7")
        a("    s_lshr_b32 s2, s2, 3")
        a(f"    s_mul_i32 s3, s3, {nwg//8}")
        a("    s_add_u32 s2, s2, s3")
    offs = []
    B = nv
    if layout == "wave":
        a(f"    s_mul_i32 s3, s2, {wgbytes}")
        if u == 1:
            a(f"    v_lshl_add_u32 v{B}, v0, 4, s3")
        else:
            a(f"    v_lshrrev_b32 v{B+1}, 6, v0")
            a(f"    v_and_b32 v{B}, 63, v0")
            a(f"    v_mul_u32_u24 v{B+1}, {1024*u}, v{B+1}")
            a(f"    v_lshl_add_u32 v{B}, v{B}, 4, s3")
            a(f"    v_add_u32 v{B}, v{B}, v{B+1}")
        cur = B
        nv = B + 1
        for i in range(u):
            if i and i % 4 == 0:
                a(f"    v_add_u32 v{nv}, {4096*(i//4)}, v{B}")
                cur = nv
                nv += 1
            offs.append((cur, (i % 4) * 1024))
        nv = max(nv, B + 2)
    elif layout in ("wg", "grid"):
        stride = bt * 16 if layout == "wg" else bt * 16 * nwg
        a(f"    s_mul_i32 s3, s2, {wgbytes if layout == 'wg' else bt*16}")
        a(f"    v_lshl_add_u32 v{B}, v0, 4, s3")
        nv = B + 1
        offs.append((B, 0))
        for i in range(1, u):
            a(f"    v_add_u32 v{nv}, {i*stride}, v{B}")
            offs.append((nv, 0))
            nv += 1
    else:
        raise ValueError(layout)
    base = (nv + 3) // 4 * 4
    nbuf = u
    X = [base + 8 * i for i in range(nbuf)]
    F = [base + 8 * i + 4 for i in range(nbuf)]
    T = base + 8 * nbuf
    MASK = "s26" if smask else "0xffff0000"
    if smask:
        a("    s_mov_b32 s26, 0xffff0000")
    a("    s_waitcnt lgkmcnt(0)")
    stamp('karg')
    if trace:
        a("    s_memrealtime s[42:43]")
    q = []
    def imm(o):
        return f" offset:{o}" if o else ""
    def load(i):
        v, o = offs[i]
        for w in order:
            dst = X[i] if w == "x" else F[i]
            sb = "s[4:5]" if w == "x" else "s[6:7]"
            a(f"    global_load_dwordx4 v[{dst}:{dst+3}], v{v}, {sb}{imm(o)} {ld}".rstrip())
            q.append((w, i))
    def store(i):
        if nost: return
        v, o = offs[i]
        sf = st if (stw is None or str(i) in str(stw)) else ""
        a(f"    global_store_dwordx4 v{v}, v[{X[i]}:{X[i]+3}], s[10:11]{imm(o)} {sf}".rstrip())
        q.append(("s", i))
    def wait(tag):
        idx = q.index(tag)
        n = len(q) - 1 - idx
        a(f"    s_waitcnt vmcnt({min(n,63)})")
        del q[:idx + 1]
    for i in range(depth):
        load(i)
        if i == 0:
            a("    s_load_dword s24, s[8:9], 0")
    if touch:
        a("    s_mov_b64 exec, 1")
        a(f"    global_load_dword v{base-1}, v{offs[0][0]}, s[10:11]")
        a("    s_mov_b64 exec, -1")
        q.append(("t", 0))
    stamp('ldiss')
    if amp or lst:
        a("    s_cmp_lg_u32 s2, 0")
        a("    s_cbranch_scc1 L_nopub")
        a("    v_cmp_eq_u32 vcc, 0, v0")
        a("    s_and_saveexec_b64 s[32:33], vcc")
        a("    s_cbranch_execz L_nopub2")
        a("    v_mov_b32 v1, s40")
        a("    v_or_b32 v1, 1, v1")
        a("    global_store_dword v0, v1, s[34:35] sc0 sc1")
        a("L_nopub2:")
        a("    s_mov_b64 exec, s[32:33]")
        a("L_nopub:")
    a("    s_waitcnt lgkmcnt(0)")
    stamp('alpha')
    a("    s_lshl_b32 s24, s24, 16")
    a("    s_mov_b32 s25, s24")
    pend = []
    for i in range(u):
        x, f = X[i], F[i]
        first = (order[0], i); last = (order[1], i)
        if mode == "exact":
            if order == "fx":
                wait(first)
            else:
                wait(last)
            if trace and i == 0:
                a("    s_memrealtime s[44:45]")
            if trace and i == u - 1:
                a("    s_memrealtime s[46:47]")
            if i == 0: stamp('d0')
            if i == u - 1: stamp('dN')
            if ldpos == "before" and i + depth < u and order != "fx":
                load(i + depth)
            for j in range(4):
                a(f"    v_lshlrev_b32 v{T+2*j}, 16, v{f+j}")
                a(f"    v_and_b32 v{T+2*j+1}, {MASK}, v{f+j}")
            for j in range(4):
                a(f"    v_pk_mul_f32 v[{T+2*j}:{T+2*j+1}], v[{T+2*j}:{T+2*j+1}], s[24:25]")
            if cvt0:
                for j in range(8):
                    a(f"    v_cvt_pk_bf16_f32 v{T+j}, 0, v{T+j}")
            else:
                for j in range(4):
                    a(f"    v_cvt_pk_bf16_f32 v{f+j}, v{T+2*j}, v{T+2*j+1}")
                for j in range(4):
                    a(f"    v_lshlrev_b32 v{T+2*j}, 16, v{f+j}")
                    a(f"    v_and_b32 v{T+2*j+1}, {MASK}, v{f+j}")
            if order == "fx":
                wait(last)
                if ldpos == "before" and i + depth < u:
                    load(i + depth)
            for j in range(4):
                a(f"    v_lshlrev_b32 v{T+8+2*j}, 16, v{x+j}")
                a(f"    v_and_b32 v{T+8+2*j+1}, {MASK}, v{x+j}")
            for j in range(4):
                a(f"    v_pk_add_f32 v[{T+2*j}:{T+2*j+1}], v[{T+2*j}:{T+2*j+1}], v[{T+8+2*j}:{T+8+2*j+1}]")
            for j in range(4):
                a(f"    v_cvt_pk_bf16_f32 v{x+j}, v{T+2*j}, v{T+2*j+1}")
        elif mode == "fused":
            wait(last)
            if trace and i == 0:
                a("    s_memrealtime s[44:45]")
            if trace and i == u - 1:
                a("    s_memrealtime s[46:47]")
            if ldpos == "before" and i + depth < u:
                load(i + depth)
            for j in range(4):
                a(f"    v_lshlrev_b32 v{T+2*j}, 16, v{f+j}")
                a(f"    v_and_b32 v{T+2*j+1}, {MASK}, v{f+j}")
                a(f"    v_lshlrev_b32 v{T+8+2*j}, 16, v{x+j}")
                a(f"    v_and_b32 v{T+8+2*j+1}, {MASK}, v{x+j}")
            for j in range(4):
                a(f"    v_pk_fma_f32 v[{T+2*j}:{T+2*j+1}], v[{T+2*j}:{T+2*j+1}], s[24:25], v[{T+8+2*j}:{T+8+2*j+1}]")
            for j in range(4):
                a(f"    v_cvt_pk_bf16_f32 v{x+j}, v{T+2*j}, v{T+2*j+1}")
        pend.append(i)
        if not stdelay or i + depth >= u - 1 + (1 if ldpos == "after" else 0):
            for k in pend: store(k)
            del pend[:]
        if i in fls:
            a(f"    s_cmp_ge_u32 s2, {fln}")
            a(f"    s_cbranch_scc1 L_nobar{i}")
            a("    s_barrier")
            a(f"L_nobar{i}:")
        if ldpos == "after" and i + depth < u:
            load(i + depth)
    if trace:
        a("    s_memrealtime s[48:49]")
        a("    s_waitcnt vmcnt(0)")
        a("    s_memrealtime s[50:51]")
        a("    s_waitcnt lgkmcnt(0)")
        a("    s_mov_b64 exec, 1")
        for j, sr in enumerate((40, 42, 44, 46, 48, 50, 39, 52)):
            a(f"    v_mov_b32 v{T+j}, s{sr}")
        a(f"    global_store_dwordx4 v{TR}, v[{T}:{T+3}], s[36:37]")
        a(f"    global_store_dwordx4 v{TR}, v[{T+4}:{T+7}], s[36:37] offset:16")
    if prof:
        stamp('stiss')
        a("    s_waitcnt vmcnt(0)")
        stamp('end')
        a("    s_getreg_b32 s37, hwreg(HW_REG_XCC_ID)")
        a("    s_and_b32 s37, s37, 7")
        a("    s_lshl_b32 s37, s37, 2")
        a("    s_waitcnt lgkmcnt(0)")
        a("    s_mov_b64 exec, 1")
        a("    s_not_b32 s38, s40")
        a("    v_mov_b32 v1, s37")
        a("    v_mov_b32 v2, s38")
        a("    v_mov_b32 v3, s46")
        a("    global_atomic_umax v1, v2, s[34:35] sc1")
        a("    global_atomic_umax v1, v3, s[34:35] offset:32 sc1")
    if amp:
        stamp('stiss')
        a("    s_waitcnt vmcnt(0)")
        stamp('end')
        if pt == 'entry':
            a("    s_mov_b32 s46, s40")
        if sel is not None:
            a(f"    s_cmp_lg_u32 s2, {sel}")
            a("    s_cbranch_scc1 L_end")
        if selmod is not None:
            a("    s_and_b32 s38, s2, 7")
            a(f"    s_cmp_lg_u32 s38, {selmod}")
            a("    s_cbranch_scc1 L_end")
        a("    s_load_dword s36, s[34:35], 0")
        a("    s_waitcnt lgkmcnt(0)")
        a("    s_cmp_lg_u32 s36, 0")
        a("    s_cbranch_scc1 L_gotref")
        a("    v_mov_b32 v1, 0")
        a("    s_mov_b32 s38, 0")
        a("L_poll:")
        a("    s_add_u32 s38, s38, 1")
        a("    s_cmp_gt_u32 s38, 200")
        a("    s_cbranch_scc1 L_end")
        a("    s_sleep 4")
        a("    global_load_dword v2, v1, s[34:35] sc0 sc1")
        a("    s_waitcnt vmcnt(0)")
        a("    v_readfirstlane_b32 s36, v2")
        a("    s_cmp_eq_u32 s36, 0")
        a("    s_cbranch_scc1 L_poll")
        a("L_gotref:")
        if pt == 'xcc':
            a("    s_getreg_b32 s37, hwreg(HW_REG_XCC_ID)")
            a("    s_and_b32 s37, s37, 15")
        else:
            a("    s_sub_u32 s37, s46, s36")
        a(f"    s_mul_i32 s37, s37, {amp}")
        a(f"    s_add_u32 s37, s37, {base_t}")
        a("    s_min_i32 s37, s37, 20000")
        a("L_spin2:")
        a("    s_sleep 2")
        a("    s_memrealtime s[30:31]")
        a("    s_waitcnt lgkmcnt(0)")
        a("    s_sub_u32 s30, s30, s36")
        a("    s_cmp_lt_i32 s30, s37")
        a("    s_cbranch_scc1 L_spin2")
    if spin is not None:
        a("    s_waitcnt vmcnt(0)")
        a("L_spin:")
        a("    s_memrealtime s[30:31]")
        a("    s_waitcnt lgkmcnt(0)")
        a("    s_sub_u32 s30, s30, s40")
        a(f"    s_cmp_lt_u32 s30, {spin}")
        a("    s_cbranch_scc1 L_spin")
    a("L_end:")
    a("    s_endpgm")
    if fl is not None:
        a("L_helper:")
        a(f"    s_cmp_ge_u32 s2, {fln}")
        a("    s_cbranch_scc1 L_hend")
        for i in fls:
            a("    s_barrier")
            a(f"    buffer_wbl2 {wb.replace('+', ' ')}".rstrip())
        if flw:
            a("    s_waitcnt vmcnt(0)")
        a("L_hend:")
        a("    s_endpgm")
    if lst:
        a(".globl meas_kernel")
        a(".p2align 8")
        a(".type meas_kernel,@function")
        a("meas_kernel:")
        a("    s_memrealtime s[40:41]")
        a("    s_load_dwordx2 s[34:35], s[0:1], 40")
        a("    s_cmp_ge_u32 s2, 1")
        a("    s_cbranch_scc1 L_mend")
        a("    v_mov_b32 v1, 0")
        a("    s_waitcnt lgkmcnt(0)")
        a("    global_load_dword v2, v1, s[34:35] sc0 sc1")
        a("    s_waitcnt vmcnt(0)")
        a("    v_readfirstlane_b32 s36, v2")
        a("    s_sub_u32 s37, s40, s36")
        a(f"    s_mul_i32 s37, s37, {lst}")
        a("    s_min_u32 s37, s37, 20000")
        a("L_mspin:")
        a("    s_memrealtime s[30:31]")
        a("    s_waitcnt lgkmcnt(0)")
        a("    s_sub_u32 s30, s30, s40")
        a("    s_cmp_lt_u32 s30, s37")
        a("    s_cbranch_scc1 L_mspin")
        a("L_mend:")
        a("    s_endpgm")
    nvg = T + 16
    if vgpr: nvg = max(nvg, vgpr)
    acc = (nvg + 3) // 4 * 4
    a('.section .rodata,"a"')
    a(".p2align 6")
    a(f".amdhsa_kernel {NAME}")
    a(f"  .amdhsa_next_free_vgpr {nvg}")
    a(f"  .amdhsa_next_free_sgpr {sgpr or (56 if (trace or spin is not None or amp or prof or lst) else 32)}")
    a(f"  .amdhsa_accum_offset {acc}")
    a("  .amdhsa_group_segment_fixed_size 0")
    a("  .amdhsa_kernarg_size 48")
    a("  .amdhsa_user_sgpr_count 2")
    a("  .amdhsa_user_sgpr_kernarg_segment_ptr 1")
    a("  .amdhsa_system_sgpr_workgroup_id_x 1")
    a("  .amdhsa_float_denorm_mode_32 3")
    a(".end_amdhsa_kernel")
    if lst:
        a(".p2align 6")
        a(".amdhsa_kernel meas_kernel")
        a("  .amdhsa_next_free_vgpr 8")
        a("  .amdhsa_next_free_sgpr 56")
        a("  .amdhsa_accum_offset 8")
        a("  .amdhsa_group_segment_fixed_size 0")
        a("  .amdhsa_kernarg_size 48")
        a("  .amdhsa_user_sgpr_count 2")
        a("  .amdhsa_user_sgpr_kernarg_segment_ptr 1")
        a("  .amdhsa_system_sgpr_workgroup_id_x 1")
        a(".end_amdhsa_kernel")
    return "\n".join(L) + "\n"

if __name__ == "__main__":
    out = sys.argv[1]
    kw = {}
    for kv in sys.argv[2:]:
        k, v = kv.split("=", 1)
        if k in ("ld", "st"): v = v.replace("+", " ")
        elif v.lstrip("-").isdigit(): v = int(v)
        kw[k] = v
    open(out, "w").write(gen(**kw))
```

```python
import sys
from gen import HEADER, NBYTES, NAME

def gen(depth=3, ld="nt", bal=1, amp=0, pt='end', sel=None, selmod=None, base_t=300, order="fx", cvt0=1,
        epos="first", lanes=8, layout="wg", split=0):
    bt, u = 256, 7
    wgbytes = bt * 16 * u
    nwg = NBYTES // wgbytes
    L = []
    a = L.append
    a(HEADER + f"; @launch grid=({nwg},1,1) block=({bt},1,1) lds=0")
    a('.amdgcn_target "amdgcn-amd-amdhsa--gfx950"')
    a(".text")
    a(f".globl {NAME}")
    a(".p2align 8")
    a(f".type {NAME},@function")
    a(f"{NAME}:")
    if amp:
        a("    s_memrealtime s[40:41]")
    a("    s_load_dwordx8 s[4:11], s[0:1], 0      ; x, fx, alpha, out")
    if amp:
        a("    s_load_dwordx2 s[34:35], s[0:1], 32")
    def stamp(name):
        if amp and pt == name:
            a("    s_memrealtime s[46:47]")
    a(f"    s_cmp_ge_u32 s2, {nwg}")
    a("    s_cbranch_scc1 L_end")
    stride = bt * 16 if layout == "wg" else bt * 16 * nwg
    a(f"    s_mul_i32 s3, s2, {wgbytes if layout == 'wg' else bt*16}")
    a("    v_lshl_add_u32 v2, v0, 4, s3")
    offs = [2]
    for i in range(1, u):
        a(f"    v_add_u32 v{2+i}, {i*stride}, v2")
        offs.append(2 + i)
    if bal:
        a("    s_and_b32 s12, s2, 7")
        a("    s_sub_u32 s13, s2, s12")
        a(f"    s_mul_i32 s13, s13, {wgbytes if layout == 'wg' else bt*16}")
        a(f"    s_mul_i32 s14, s12, {lanes*64}")
        a("    s_add_u32 s13, s13, s14")
        a(f"    s_add_u32 s13, s13, {(u-1)*stride}")
        a("    v_lshrrev_b32 v9, 6, v0                ; wave")
        a("    v_and_b32 v10, 63, v0")
        a(f"    v_mul_u32_u24 v9, {lanes*16}, v9")
        a("    v_lshl_add_u32 v9, v10, 4, v9")
        a("    v_add_u32 v9, s13, v9")
        a("    s_cmp_eq_u32 s12, 0")
        if lanes == 8:
            a("    s_cselect_b64 s[16:17], 0, -1          ; lanes of the last unit")
        else:
            a(f"    v_cmp_le_u32 vcc, {lanes*32}, v0")
            a("    s_cselect_b64 s[16:17], vcc, -1")
    base = 12
    nb = u + (1 if bal else 0)
    X = [base + 8 * i for i in range(nb)]
    F = [base + 8 * i + 4 for i in range(nb)]
    T = base + 8 * nb
    E = u
    if bal: offs.append(9)
    a("    s_mov_b32 s26, 0xffff0000")
    a("    s_waitcnt lgkmcnt(0)")
    stamp('karg')
    q = []
    def setexec(i):
        if bal and i == E: a(f"    s_mov_b64 exec, {(1 << lanes) - 1:#x}")
        if bal and i == u - 1: a("    s_mov_b64 exec, s[16:17]")
    def resexec(i):
        if bal and i in (E, u - 1): a("    s_mov_b64 exec, -1")
    def load1(i, w):
        dst = X[i] if w == "x" else F[i]
        sb = "s[4:5]" if w == "x" else "s[6:7]"
        a(f"    global_load_dwordx4 v[{dst}:{dst+3}], v{offs[i]}, {sb} {ld}".rstrip())
        q.append((w, i))
    def load(i):
        setexec(i)
        for w in order: load1(i, w)
        resexec(i)
    def store(i, last=False):
        setexec(i)
        a(f"    global_store_dwordx4 v{offs[i]}, v[{X[i]}:{X[i]+3}], s[10:11]")
        q.append(("s", i))
        if not last: resexec(i)
    def wait(tag):
        if tag not in q: return
        idx = q.index(tag)
        n = len(q) - 1 - idx
        a(f"    s_waitcnt vmcnt({n})")
        del q[:idx + 1]
    def part1(i):
        f = F[i]
        for j in range(4):
            a(f"    v_lshlrev_b32 v{T+2*j}, 16, v{f+j}")
            a(f"    v_and_b32 v{T+2*j+1}, s26, v{f+j}")
        for j in range(4):
            a(f"    v_pk_mul_f32 v[{T+2*j}:{T+2*j+1}], v[{T+2*j}:{T+2*j+1}], s[24:25]")
        if cvt0:
            for j in range(8):
                a(f"    v_cvt_pk_bf16_f32 v{T+j}, 0, v{T+j}")
        else:
            for j in range(4):
                a(f"    v_cvt_pk_bf16_f32 v{f+j}, v{T+2*j}, v{T+2*j+1}")
            for j in range(4):
                a(f"    v_lshlrev_b32 v{T+2*j}, 16, v{f+j}")
                a(f"    v_and_b32 v{T+2*j+1}, s26, v{f+j}")
    def part2(i):
        x = X[i]
        for j in range(4):
            a(f"    v_lshlrev_b32 v{T+8+2*j}, 16, v{x+j}")
            a(f"    v_and_b32 v{T+8+2*j+1}, s26, v{x+j}")
        for j in range(4):
            a(f"    v_pk_add_f32 v[{T+2*j}:{T+2*j+1}], v[{T+2*j}:{T+2*j+1}], v[{T+8+2*j}:{T+8+2*j+1}]")
        for j in range(4):
            a(f"    v_cvt_pk_bf16_f32 v{x+j}, v{T+2*j}, v{T+2*j+1}")
    if bal and epos == "first":
        load(E)
    for i in range(depth):
        load(i)
        if i == 0:
            a("    s_load_dword s24, s[8:9], 0")
    if bal and epos == "last":
        load(E)
    stamp('ldiss')
    if amp:
        a("    s_cmp_lg_u32 s2, 0")
        a("    s_cbranch_scc1 L_nopub")
        a("    v_cmp_eq_u32 vcc, 0, v0")
        a("    s_and_saveexec_b64 s[32:33], vcc")
        a("    s_cbranch_execz L_nopub2")
        a("    v_mov_b32 v1, s40")
        a("    v_or_b32 v1, 1, v1")
        a("    global_store_dword v0, v1, s[34:35] sc0 sc1")
        a("L_nopub2:")
        a("    s_mov_b64 exec, s[32:33]")
        a("L_nopub:")
    a("    s_waitcnt lgkmcnt(0)")
    a("    s_lshl_b32 s24, s24, 16")
    a("    s_mov_b32 s25, s24")
    epoint = 0 if epos == "first" else depth
    for i in range(u):
        if bal and lanes == 8 and i == u - 1:
            a("    s_cmp_eq_u32 s12, 0")
            a("    s_cbranch_scc1 L_done")
        nxt = i + depth if i + depth < u else None
        if order == "fx":
            wait(("f", i))
            if split and nxt is not None:
                setexec(nxt); load1(nxt, "f"); resexec(nxt)
            if i == 0: stamp('d0')
            if i == u - 1: stamp('dN')
            if nxt is not None and not split:
                wait(("x", i)); load(nxt)
            if bal and i == epoint:
                if ("x", E) in q: wait(("x", E))
                part1(E); part2(E); store(E)
            part1(i)
            wait(("x", i))
            if split and nxt is not None:
                setexec(nxt); load1(nxt, "x"); resexec(nxt)
            part2(i)
        else:
            wait(("f", i))
            if i == 0: stamp('d0')
            if i == u - 1: stamp('dN')
            if nxt is not None: load(nxt)
            if bal and i == epoint:
                if ("f", E) in q: wait(("f", E))
                part1(E); part2(E); store(E)
            part1(i); part2(i)
        store(i, last=(i == u - 1 and not amp))
    a("L_done:")
    if amp:
        stamp('stiss')
        a("    s_waitcnt vmcnt(0)")
        stamp('end')
        if pt == 'entry':
            a("    s_mov_b32 s46, s40")
        if sel is not None:
            a(f"    s_cmp_lg_u32 s2, {sel}")
            a("    s_cbranch_scc1 L_end")
        if selmod is not None:
            a("    s_and_b32 s38, s2, 7")
            a(f"    s_cmp_lg_u32 s38, {selmod}")
            a("    s_cbranch_scc1 L_end")
        a("    s_load_dword s36, s[34:35], 0")
        a("    s_waitcnt lgkmcnt(0)")
        a("    s_cmp_lg_u32 s36, 0")
        a("    s_cbranch_scc1 L_gotref")
        a("    v_mov_b32 v1, 0")
        a("    s_mov_b32 s38, 0")
        a("L_poll:")
        a("    s_add_u32 s38, s38, 1")
        a("    s_cmp_gt_u32 s38, 200")
        a("    s_cbranch_scc1 L_end")
        a("    s_sleep 4")
        a("    global_load_dword v2, v1, s[34:35] sc0 sc1")
        a("    s_waitcnt vmcnt(0)")
        a("    v_readfirstlane_b32 s36, v2")
        a("    s_cmp_eq_u32 s36, 0")
        a("    s_cbranch_scc1 L_poll")
        a("L_gotref:")
        a("    s_sub_u32 s37, s46, s36")
        a(f"    s_mul_i32 s37, s37, {amp}")
        a(f"    s_add_u32 s37, s37, {base_t}")
        a("    s_min_i32 s37, s37, 20000")
        a("L_spin2:")
        a("    s_sleep 2")
        a("    s_memrealtime s[30:31]")
        a("    s_waitcnt lgkmcnt(0)")
        a("    s_sub_u32 s30, s30, s36")
        a("    s_cmp_lt_i32 s30, s37")
        a("    s_cbranch_scc1 L_spin2")
    a("L_end:")
    a("    s_endpgm")
    nvg = T + 16
    acc = (nvg + 3) // 4 * 4
    a('.section .rodata,"a"')
    a(".p2align 6")
    a(f".amdhsa_kernel {NAME}")
    a(f"  .amdhsa_next_free_vgpr {nvg}")
    a(f"  .amdhsa_next_free_sgpr {56 if amp else 32}")
    a(f"  .amdhsa_accum_offset {acc}")
    a("  .amdhsa_group_segment_fixed_size 0")
    a("  .amdhsa_kernarg_size 48")
    a("  .amdhsa_user_sgpr_count 2")
    a("  .amdhsa_user_sgpr_kernarg_segment_ptr 1")
    a("  .amdhsa_system_sgpr_workgroup_id_x 1")
    a("  .amdhsa_float_denorm_mode_32 3")
    a(".end_amdhsa_kernel")
    return "\n".join(L) + "\n"

if __name__ == "__main__":
    out = sys.argv[1]
    kw = {}
    for kv in sys.argv[2:]:
        k, v = kv.split("=", 1)
        if k in ("ld", "st"): v = v.replace("+", " ")
        elif v.lstrip("-").isdigit(): v = int(v)
        kw[k] = v
    open(out, "w").write(gen(**kw))
```

```python
import sys
from gen import HEADER, NBYTES, NAME

def gen(depth=3, ld="nt", bal=1, amp=0, pt='end', sel=None, selmod=None, base_t=300, order="fx", cvt0=1,
        epos="first", lanes=8, layout="wg", split=0):
    bt, u = 256, 7
    wgbytes = bt * 16 * u
    nwg = NBYTES // wgbytes
    L = []
    a = L.append
    a(HEADER + f"; @launch grid=({nwg},1,1) block=({bt},1,1) lds=0")
    a('.amdgcn_target "amdgcn-amd-amdhsa--gfx950"')
    a(".text")
    a(f".globl {NAME}")
    a(".p2align 8")
    a(f".type {NAME},@function")
    a(f"{NAME}:")
    if amp:
        a("    s_memrealtime s[40:41]")
    a("    s_load_dwordx8 s[4:11], s[0:1], 0      ; x, fx, alpha, out")
    if amp:
        a("    s_load_dwordx2 s[34:35], s[0:1], 32")
    def stamp(name):
        if amp and pt == name:
            a("    s_memrealtime s[46:47]")
    a(f"    s_cmp_ge_u32 s2, {nwg}")
    a("    s_cbranch_scc1 L_end")
    stride = bt * 16 if layout == "wg" else bt * 16 * nwg
    a(f"    s_mul_i32 s3, s2, {wgbytes if layout == 'wg' else bt*16}")
    a("    v_lshl_add_u32 v2, v0, 4, s3")
    offs = [2]
    for i in range(1, u):
        a(f"    v_add_u32 v{2+i}, {i*stride}, v2")
        offs.append(2 + i)
    if bal:
        a("    s_and_b32 s12, s2, 7")
        a("    s_sub_u32 s13, s2, s12")
        a(f"    s_mul_i32 s13, s13, {wgbytes if layout == 'wg' else bt*16}")
        a(f"    s_mul_i32 s14, s12, {lanes*64}")
        a("    s_add_u32 s13, s13, s14")
        a(f"    s_add_u32 s13, s13, {(u-1)*stride}")
        a("    v_lshrrev_b32 v9, 6, v0                ; wave")
        a("    v_and_b32 v10, 63, v0")
        a(f"    v_mul_u32_u24 v9, {lanes*16}, v9")
        a("    v_lshl_add_u32 v9, v10, 4, v9")
        a("    v_add_u32 v9, s13, v9")
        a("    s_cmp_eq_u32 s12, 0")
        if lanes == 8:
            a("    s_cselect_b64 s[16:17], 0, -1          ; lanes of the last unit")
        else:
            a(f"    v_cmp_le_u32 vcc, {lanes*32}, v0")
            a("    s_cselect_b64 s[16:17], vcc, -1")
    base = 12
    nb = u + (1 if bal else 0)
    X = [base + 8 * i for i in range(nb)]
    F = [base + 8 * i + 4 for i in range(nb)]
    T = base + 8 * nb
    E = u
    if bal: offs.append(9)
    a("    s_mov_b32 s26, 0xffff0000")
    a("    s_waitcnt lgkmcnt(0)")
    stamp('karg')
    q = []
    def setexec(i):
        if bal and i == E: a(f"    s_mov_b64 exec, {(1 << lanes) - 1:#x}")
        if bal and i == u - 1: a("    s_mov_b64 exec, s[16:17]")
    def resexec(i):
        if bal and i in (E, u - 1): a("    s_mov_b64 exec, -1")
    def load1(i, w):
        dst = X[i] if w == "x" else F[i]
        sb = "s[4:5]" if w == "x" else "s[6:7]"
        a(f"    global_load_dwordx4 v[{dst}:{dst+3}], v{offs[i]}, {sb} {ld}".rstrip())
        q.append((w, i))
    def load(i):
        setexec(i)
        for w in order: load1(i, w)
        resexec(i)
    def store(i, last=False):
        setexec(i)
        a(f"    global_store_dwordx4 v{offs[i]}, v[{X[i]}:{X[i]+3}], s[10:11]")
        q.append(("s", i))
        if not last: resexec(i)
    def wait(tag):
        if tag not in q: return
        idx = q.index(tag)
        n = len(q) - 1 - idx
        a(f"    s_waitcnt vmcnt({n})")
        del q[:idx + 1]
    def part1(i):
        f = F[i]
        for j in range(4):
            a(f"    v_lshlrev_b32 v{T+2*j}, 16, v{f+j}")
            a(f"    v_and_b32 v{T+2*j+1}, s26, v{f+j}")
        for j in range(4):
            a(f"    v_pk_mul_f32 v[{T+2*j}:{T+2*j+1}], v[{T+2*j}:{T+2*j+1}], s[24:25]")
        if cvt0:
            for j in range(8):
                a(f"    v_cvt_pk_bf16_f32 v{T+j}, 0, v{T+j}")
        else:
            for j in range(4):
                a(f"    v_cvt_pk_bf16_f32 v{f+j}, v{T+2*j}, v{T+2*j+1}")
            for j in range(4):
                a(f"    v_lshlrev_b32 v{T+2*j}, 16, v{f+j}")
                a(f"    v_and_b32 v{T+2*j+1}, s26, v{f+j}")
    def part2(i):
        x = X[i]
        for j in range(4):
            a(f"    v_lshlrev_b32 v{T+8+2*j}, 16, v{x+j}")
            a(f"    v_and_b32 v{T+8+2*j+1}, s26, v{x+j}")
        for j in range(4):
            a(f"    v_pk_add_f32 v[{T+2*j}:{T+2*j+1}], v[{T+2*j}:{T+2*j+1}], v[{T+8+2*j}:{T+8+2*j+1}]")
        for j in range(4):
            a(f"    v_cvt_pk_bf16_f32 v{x+j}, v{T+2*j}, v{T+2*j+1}")
    if bal and epos == "first":
        load(E)
    for i in range(depth):
        load(i)
        if i == 0:
            a("    s_load_dword s24, s[8:9], 0")
    if bal and epos == "last":
        load(E)
    stamp('ldiss')
    a("    s_waitcnt lgkmcnt(0)")
    a("    s_lshl_b32 s24, s24, 16")
    a("    s_mov_b32 s25, s24")
    epoint = 0 if epos == "first" else depth
    for i in range(u):
        if bal and lanes == 8 and i == u - 1:
            a("    s_cmp_eq_u32 s12, 0")
            a("    s_cbranch_scc1 L_done")
        nxt = i + depth if i + depth < u else None
        if order == "fx":
            wait(("f", i))
            if split and nxt is not None:
                setexec(nxt); load1(nxt, "f"); resexec(nxt)
            if i == 0: stamp('d0')
            if i == u - 1: stamp('dN')
            if nxt is not None and not split:
                wait(("x", i)); load(nxt)
            if bal and i == epoint:
                if ("x", E) in q: wait(("x", E))
                part1(E); part2(E); store(E)
            part1(i)
            wait(("x", i))
            if split and nxt is not None:
                setexec(nxt); load1(nxt, "x"); resexec(nxt)
            part2(i)
        else:
            wait(("f", i))
            if i == 0: stamp('d0')
            if i == u - 1: stamp('dN')
            if nxt is not None: load(nxt)
            if bal and i == epoint:
                if ("f", E) in q: wait(("f", E))
                part1(E); part2(E); store(E)
            part1(i); part2(i)
        store(i, last=(i == u - 1 and not amp))
    a("L_done:")
    if amp:
        stamp('stiss')
        a("    s_waitcnt vmcnt(0)")
        stamp('end')
        a("    s_waitcnt lgkmcnt(0)")
        a("    s_cmp_lg_u32 s2, 0")
        a("    s_cbranch_scc1 L_nopub")
        a("    v_cmp_eq_u32 vcc, 0, v0")
        a("    s_and_saveexec_b64 s[32:33], vcc")
        a("    s_cbranch_execz L_nopub2")
        a("    v_mov_b32 v1, s40")
        a("    v_or_b32 v1, 1, v1")
        a("    global_store_dword v0, v1, s[34:35] sc0 sc1")
        a("L_nopub2:")
        a("    s_mov_b64 exec, s[32:33]")
        a("L_nopub:")
        if pt == 'entry':
            a("    s_mov_b32 s46, s40")
        if sel is not None:
            a(f"    s_cmp_lg_u32 s2, {sel}")
            a("    s_cbranch_scc1 L_end")
        if selmod is not None:
            a("    s_and_b32 s38, s2, 7")
            a(f"    s_cmp_lg_u32 s38, {selmod}")
            a("    s_cbranch_scc1 L_end")
        a("    s_sleep 64")
        a("    v_mov_b32 v1, 0")
        a("    s_mov_b32 s38, 0")
        a("L_poll:")
        a("    s_add_u32 s38, s38, 1")
        a("    s_cmp_gt_u32 s38, 200")
        a("    s_cbranch_scc1 L_end")
        a("    s_sleep 4")
        a("    global_load_dword v2, v1, s[34:35] sc0 sc1")
        a("    s_waitcnt vmcnt(0)")
        a("    v_readfirstlane_b32 s36, v2")
        a("    s_cmp_eq_u32 s36, 0")
        a("    s_cbranch_scc1 L_poll")
        a("L_gotref:")
        a("    s_sub_u32 s37, s46, s36")
        a(f"    s_mul_i32 s37, s37, {amp}")
        a(f"    s_add_u32 s37, s37, {base_t}")
        a("    s_min_i32 s37, s37, 20000")
        a("L_spin2:")
        a("    s_sleep 2")
        a("    s_memrealtime s[30:31]")
        a("    s_waitcnt lgkmcnt(0)")
        a("    s_sub_u32 s30, s30, s36")
        a("    s_cmp_lt_i32 s30, s37")
        a("    s_cbranch_scc1 L_spin2")
    a("L_end:")
    a("    s_endpgm")
    nvg = T + 16
    acc = (nvg + 3) // 4 * 4
    a('.section .rodata,"a"')
    a(".p2align 6")
    a(f".amdhsa_kernel {NAME}")
    a(f"  .amdhsa_next_free_vgpr {nvg}")
    a(f"  .amdhsa_next_free_sgpr {56 if amp else 32}")
    a(f"  .amdhsa_accum_offset {acc}")
    a("  .amdhsa_group_segment_fixed_size 0")
    a("  .amdhsa_kernarg_size 48")
    a("  .amdhsa_user_sgpr_count 2")
    a("  .amdhsa_user_sgpr_kernarg_segment_ptr 1")
    a("  .amdhsa_system_sgpr_workgroup_id_x 1")
    a("  .amdhsa_float_denorm_mode_32 3")
    a(".end_amdhsa_kernel")
    return "\n".join(L) + "\n"

if __name__ == "__main__":
    out = sys.argv[1]
    kw = {}
    for kv in sys.argv[2:]:
        k, v = kv.split("=", 1)
        if k in ("ld", "st"): v = v.replace("+", " ")
        elif v.lstrip("-").isdigit(): v = int(v)
        kw[k] = v
    open(out, "w").write(gen(**kw))
```

```python
import sys, argparse
from gen import HEADER, NBYTES, NAME

def gen(bt=256, u=7, depth=7, layout="wave", ld="", st="", mode="exact", order="xf",
        trace=0, xcd=0, nost=0, vgpr=None, sgpr=None, ldpos="before", spin=None, smask=1, only=None,
        amp=0, pt='end', sel=None, selmod=None, base_t=300, rnd=0, prof=0, lst=0, fl=None, fln=8, flw=1, wb='sc1', stw=None, cvt0=0, stdelay=0, touch=0):
    wgbytes = bt * 16 * u
    assert NBYTES % wgbytes == 0, (bt, u)
    nwg = NBYTES // wgbytes
    depth = min(depth, u)
    L = []
    a = L.append
    lbt = bt + 64 if fl is not None else bt
    fls = [] if fl is None else [int(c) for c in str(fl)]
    if lst:
        a(HEADER + f"; @launch kernel={NAME} grid=({nwg},1,1) block=({lbt},1,1) lds=0")
        a("; @launch kernel=meas_kernel grid=(1,1,1) block=(64,1,1) lds=0")
    else:
        a(HEADER + f"; @launch grid=({nwg},1,1) block=({lbt},1,1) lds=0")
    a('.amdgcn_target "amdgcn-amd-amdhsa--gfx950"')
    a(".text")
    a(f".globl {NAME}")
    a(".p2align 8")
    a(f".type {NAME},@function")
    a(f"{NAME}:")
    if trace or spin is not None or amp or prof or lst:
        a("    s_memrealtime s[40:41]")
    a("    s_load_dwordx8 s[4:11], s[0:1], 0      ; x, fx, alpha, out")
    if amp or prof:
        a("    s_load_dwordx2 s[34:35], s[0:1], 32")
    if lst:
        a("    s_load_dwordx2 s[34:35], s[0:1], 40")
    def stamp(name):
        if (amp or prof) and pt == name:
            a("    s_memrealtime s[46:47]")
    TR = 1
    nv = 2
    if trace:
        a("    s_load_dwordx2 s[36:37], s[0:1], 40")
        a(f"    s_mul_i32 s38, s2, {lbt//64}")
        a(f"    v_lshrrev_b32 v{TR}, 6, v0")
        a(f"    v_add_u32 v{TR}, s38, v{TR}")
        a(f"    v_lshlrev_b32 v{TR}, 5, v{TR}")
        a("    s_getreg_b32 s39, hwreg(HW_REG_XCC_ID)")
        a("    s_getreg_b32 s52, hwreg(HW_REG_HW_ID)")
    a(f"    s_cmp_ge_u32 s2, {nwg}")
    a("    s_cbranch_scc1 L_end")
    if fl is not None:
        a("    v_readfirstlane_b32 s3, v0")
        a(f"    s_cmp_ge_u32 s3, {bt}")
        a("    s_cbranch_scc1 L_helper")
    if only is not None:
        a("    s_and_b32 s3, s2, 7")
        a(f"    s_cmp_ge_u32 s3, {only}")
        a("    s_cbranch_scc1 L_end")
    if xcd:
        assert nwg % 8 == 0
        a("    s_and_b32 s3, s2, 7")
        a("    s_lshr_b32 s2, s2, 3")
        a(f"    s_mul_i32 s3, s3, {nwg//8}")
        a("    s_add_u32 s2, s2, s3")
    offs = []
    B = nv
    if layout == "wave":
        a(f"    s_mul_i32 s3, s2, {wgbytes}")
        if u == 1:
            a(f"    v_lshl_add_u32 v{B}, v0, 4, s3")
        else:
            a(f"    v_lshrrev_b32 v{B+1}, 6, v0")
            a(f"    v_and_b32 v{B}, 63, v0")
            a(f"    v_mul_u32_u24 v{B+1}, {1024*u}, v{B+1}")
            a(f"    v_lshl_add_u32 v{B}, v{B}, 4, s3")
            a(f"    v_add_u32 v{B}, v{B}, v{B+1}")
        cur = B
        nv = B + 1
        for i in range(u):
            if i and i % 4 == 0:
                a(f"    v_add_u32 v{nv}, {4096*(i//4)}, v{B}")
                cur = nv
                nv += 1
            offs.append((cur, (i % 4) * 1024))
        nv = max(nv, B + 2)
    elif layout in ("wg", "grid"):
        stride = bt * 16 if layout == "wg" else bt * 16 * nwg
        a(f"    s_mul_i32 s3, s2, {wgbytes if layout == 'wg' else bt*16}")
        a(f"    v_lshl_add_u32 v{B}, v0, 4, s3")
        nv = B + 1
        offs.append((B, 0))
        for i in range(1, u):
            a(f"    v_add_u32 v{nv}, {i*stride}, v{B}")
            offs.append((nv, 0))
            nv += 1
    else:
        raise ValueError(layout)
    base = (nv + 3) // 4 * 4
    nbuf = u
    X = [base + 8 * i for i in range(nbuf)]
    F = [base + 8 * i + 4 for i in range(nbuf)]
    T = base + 8 * nbuf
    MASK = "s26" if smask else "0xffff0000"
    if smask:
        a("    s_mov_b32 s26, 0xffff0000")
    a("    s_waitcnt lgkmcnt(0)")
    stamp('karg')
    if trace:
        a("    s_memrealtime s[42:43]")
    q = []
    def imm(o):
        return f" offset:{o}" if o else ""
    def load(i):
        v, o = offs[i]
        for w in order:
            dst = X[i] if w == "x" else F[i]
            sb = "s[4:5]" if w == "x" else "s[6:7]"
            a(f"    global_load_dwordx4 v[{dst}:{dst+3}], v{v}, {sb}{imm(o)} {ld}".rstrip())
            q.append((w, i))
    def store(i):
        if nost: return
        v, o = offs[i]
        sf = st if (stw is None or str(i) in str(stw)) else ""
        a(f"    global_store_dwordx4 v{v}, v[{X[i]}:{X[i]+3}], s[10:11]{imm(o)} {sf}".rstrip())
        q.append(("s", i))
    def wait(tag):
        idx = q.index(tag)
        n = len(q) - 1 - idx
        a(f"    s_waitcnt vmcnt({min(n,63)})")
        del q[:idx + 1]
    for i in range(depth):
        load(i)
        if i == 0:
            a("    s_load_dword s24, s[8:9], 0")
    if touch:
        a("    s_mov_b64 exec, 1")
        a(f"    global_load_dword v{base-1}, v{offs[0][0]}, s[10:11]")
        a("    s_mov_b64 exec, -1")
        q.append(("t", 0))
    stamp('ldiss')
    def publish():
        a("    s_cmp_lg_u32 s2, 0")
        a("    s_cbranch_scc1 L_nopub")
        a("    v_cmp_eq_u32 vcc, 0, v0")
        a("    s_and_saveexec_b64 s[32:33], vcc")
        a("    s_cbranch_execz L_nopub2")
        a("    v_mov_b32 v1, s40")
        a("    v_or_b32 v1, 1, v1")
        a("    global_store_dword v0, v1, s[34:35] sc0 sc1")
        a("L_nopub2:")
        a("    s_mov_b64 exec, s[32:33]")
        a("L_nopub:")
    a("    s_waitcnt lgkmcnt(0)")
    stamp('alpha')
    a("    s_lshl_b32 s24, s24, 16")
    a("    s_mov_b32 s25, s24")
    pend = []
    for i in range(u):
        x, f = X[i], F[i]
        first = (order[0], i); last = (order[1], i)
        if mode == "exact":
            if order == "fx":
                wait(first)
            else:
                wait(last)
            if trace and i == 0:
                a("    s_memrealtime s[44:45]")
            if trace and i == u - 1:
                a("    s_memrealtime s[46:47]")
            if i == 0: stamp('d0')
            if i == u - 1: stamp('dN')
            if ldpos == "before" and i + depth < u and order != "fx":
                load(i + depth)
            for j in range(4):
                a(f"    v_lshlrev_b32 v{T+2*j}, 16, v{f+j}")
                a(f"    v_and_b32 v{T+2*j+1}, {MASK}, v{f+j}")
            for j in range(4):
                a(f"    v_pk_mul_f32 v[{T+2*j}:{T+2*j+1}], v[{T+2*j}:{T+2*j+1}], s[24:25]")
            if cvt0:
                for j in range(8):
                    a(f"    v_cvt_pk_bf16_f32 v{T+j}, 0, v{T+j}")
            else:
                for j in range(4):
                    a(f"    v_cvt_pk_bf16_f32 v{f+j}, v{T+2*j}, v{T+2*j+1}")
                for j in range(4):
                    a(f"    v_lshlrev_b32 v{T+2*j}, 16, v{f+j}")
                    a(f"    v_and_b32 v{T+2*j+1}, {MASK}, v{f+j}")
            if order == "fx":
                wait(last)
                if ldpos == "before" and i + depth < u:
                    load(i + depth)
            for j in range(4):
                a(f"    v_lshlrev_b32 v{T+8+2*j}, 16, v{x+j}")
                a(f"    v_and_b32 v{T+8+2*j+1}, {MASK}, v{x+j}")
            for j in range(4):
                a(f"    v_pk_add_f32 v[{T+2*j}:{T+2*j+1}], v[{T+2*j}:{T+2*j+1}], v[{T+8+2*j}:{T+8+2*j+1}]")
            for j in range(4):
                a(f"    v_cvt_pk_bf16_f32 v{x+j}, v{T+2*j}, v{T+2*j+1}")
        elif mode == "fused":
            wait(last)
            if trace and i == 0:
                a("    s_memrealtime s[44:45]")
            if trace and i == u - 1:
                a("    s_memrealtime s[46:47]")
            if ldpos == "before" and i + depth < u:
                load(i + depth)
            for j in range(4):
                a(f"    v_lshlrev_b32 v{T+2*j}, 16, v{f+j}")
                a(f"    v_and_b32 v{T+2*j+1}, {MASK}, v{f+j}")
                a(f"    v_lshlrev_b32 v{T+8+2*j}, 16, v{x+j}")
                a(f"    v_and_b32 v{T+8+2*j+1}, {MASK}, v{x+j}")
            for j in range(4):
                a(f"    v_pk_fma_f32 v[{T+2*j}:{T+2*j+1}], v[{T+2*j}:{T+2*j+1}], s[24:25], v[{T+8+2*j}:{T+8+2*j+1}]")
            for j in range(4):
                a(f"    v_cvt_pk_bf16_f32 v{x+j}, v{T+2*j}, v{T+2*j+1}")
        pend.append(i)
        if not stdelay or i + depth >= u - 1 + (1 if ldpos == "after" else 0):
            for k in pend: store(k)
            del pend[:]
        if i in fls:
            a(f"    s_cmp_ge_u32 s2, {fln}")
            a(f"    s_cbranch_scc1 L_nobar{i}")
            a("    s_barrier")
            a(f"L_nobar{i}:")
        if ldpos == "after" and i + depth < u:
            load(i + depth)
    if trace:
        a("    s_memrealtime s[48:49]")
        a("    s_waitcnt vmcnt(0)")
        a("    s_memrealtime s[50:51]")
        a("    s_waitcnt lgkmcnt(0)")
        a("    s_mov_b64 exec, 1")
        for j, sr in enumerate((40, 42, 44, 46, 48, 50, 39, 52)):
            a(f"    v_mov_b32 v{T+j}, s{sr}")
        a(f"    global_store_dwordx4 v{TR}, v[{T}:{T+3}], s[36:37]")
        a(f"    global_store_dwordx4 v{TR}, v[{T+4}:{T+7}], s[36:37] offset:16")
    if prof:
        stamp('stiss')
        a("    s_waitcnt vmcnt(0)")
        stamp('end')
        a("    s_getreg_b32 s37, hwreg(HW_REG_XCC_ID)")
        a("    s_and_b32 s37, s37, 7")
        a("    s_lshl_b32 s37, s37, 2")
        a("    s_waitcnt lgkmcnt(0)")
        a("    s_mov_b64 exec, 1")
        a("    s_not_b32 s38, s40")
        a("    v_mov_b32 v1, s37")
        a("    v_mov_b32 v2, s38")
        a("    v_mov_b32 v3, s46")
        a("    global_atomic_umax v1, v2, s[34:35] sc1")
        a("    global_atomic_umax v1, v3, s[34:35] offset:32 sc1")
    if lst:
        publish()
    if amp:
        stamp('stiss')
        a("    s_waitcnt vmcnt(0)")
        stamp('end')
        a("    s_waitcnt lgkmcnt(0)")
        publish()
        if pt == 'entry':
            a("    s_mov_b32 s46, s40")
        if sel is not None:
            a(f"    s_cmp_lg_u32 s2, {sel}")
            a("    s_cbranch_scc1 L_end")
        if selmod is not None:
            a("    s_and_b32 s38, s2, 7")
            a(f"    s_cmp_lg_u32 s38, {selmod}")
            a("    s_cbranch_scc1 L_end")
        a("    s_sleep 64")
        a("    v_mov_b32 v1, 0")
        a("    s_mov_b32 s38, 0")
        a("L_poll:")
        a("    s_add_u32 s38, s38, 1")
        a("    s_cmp_gt_u32 s38, 200")
        a("    s_cbranch_scc1 L_end")
        a("    s_sleep 4")
        a("    global_load_dword v2, v1, s[34:35] sc0 sc1")
        a("    s_waitcnt vmcnt(0)")
        a("    v_readfirstlane_b32 s36, v2")
        a("    s_cmp_eq_u32 s36, 0")
        a("    s_cbranch_scc1 L_poll")
        a("L_gotref:")
        if pt == 'xcc':
            a("    s_getreg_b32 s37, hwreg(HW_REG_XCC_ID)")
            a("    s_and_b32 s37, s37, 15")
        else:
            a("    s_sub_u32 s37, s46, s36")
        a(f"    s_mul_i32 s37, s37, {amp}")
        a(f"    s_add_u32 s37, s37, {base_t}")
        a("    s_min_i32 s37, s37, 20000")
        a("L_spin2:")
        a("    s_sleep 2")
        a("    s_memrealtime s[30:31]")
        a("    s_waitcnt lgkmcnt(0)")
        a("    s_sub_u32 s30, s30, s36")
        a("    s_cmp_lt_i32 s30, s37")
        a("    s_cbranch_scc1 L_spin2")
    if spin is not None:
        a("    s_waitcnt vmcnt(0)")
        a("L_spin:")
        a("    s_memrealtime s[30:31]")
        a("    s_waitcnt lgkmcnt(0)")
        a("    s_sub_u32 s30, s30, s40")
        a(f"    s_cmp_lt_u32 s30, {spin}")
        a("    s_cbranch_scc1 L_spin")
    a("L_end:")
    a("    s_endpgm")
    if fl is not None:
        a("L_helper:")
        a(f"    s_cmp_ge_u32 s2, {fln}")
        a("    s_cbranch_scc1 L_hend")
        for i in fls:
            a("    s_barrier")
            a(f"    buffer_wbl2 {wb.replace('+', ' ')}".rstrip())
        if flw:
            a("    s_waitcnt vmcnt(0)")
        a("L_hend:")
        a("    s_endpgm")
    if lst:
        a(".globl meas_kernel")
        a(".p2align 8")
        a(".type meas_kernel,@function")
        a("meas_kernel:")
        a("    s_memrealtime s[40:41]")
        a("    s_load_dwordx2 s[34:35], s[0:1], 40")
        a("    s_cmp_ge_u32 s2, 1")
        a("    s_cbranch_scc1 L_mend")
        a("    v_mov_b32 v1, 0")
        a("    s_waitcnt lgkmcnt(0)")
        a("    global_load_dword v2, v1, s[34:35] sc0 sc1")
        a("    s_waitcnt vmcnt(0)")
        a("    v_readfirstlane_b32 s36, v2")
        a("    s_sub_u32 s37, s40, s36")
        a(f"    s_mul_i32 s37, s37, {lst}")
        a("    s_min_u32 s37, s37, 20000")
        a("L_mspin:")
        a("    s_memrealtime s[30:31]")
        a("    s_waitcnt lgkmcnt(0)")
        a("    s_sub_u32 s30, s30, s40")
        a("    s_cmp_lt_u32 s30, s37")
        a("    s_cbranch_scc1 L_mspin")
        a("L_mend:")
        a("    s_endpgm")
    nvg = T + 16
    if vgpr: nvg = max(nvg, vgpr)
    acc = (nvg + 3) // 4 * 4
    a('.section .rodata,"a"')
    a(".p2align 6")
    a(f".amdhsa_kernel {NAME}")
    a(f"  .amdhsa_next_free_vgpr {nvg}")
    a(f"  .amdhsa_next_free_sgpr {sgpr or (56 if (trace or spin is not None or amp or prof or lst) else 32)}")
    a(f"  .amdhsa_accum_offset {acc}")
    a("  .amdhsa_group_segment_fixed_size 0")
    a("  .amdhsa_kernarg_size 48")
    a("  .amdhsa_user_sgpr_count 2")
    a("  .amdhsa_user_sgpr_kernarg_segment_ptr 1")
    a("  .amdhsa_system_sgpr_workgroup_id_x 1")
    a("  .amdhsa_float_denorm_mode_32 3")
    a(".end_amdhsa_kernel")
    if lst:
        a(".p2align 6")
        a(".amdhsa_kernel meas_kernel")
        a("  .amdhsa_next_free_vgpr 8")
        a("  .amdhsa_next_free_sgpr 56")
        a("  .amdhsa_accum_offset 8")
        a("  .amdhsa_group_segment_fixed_size 0")
        a("  .amdhsa_kernarg_size 48")
        a("  .amdhsa_user_sgpr_count 2")
        a("  .amdhsa_user_sgpr_kernarg_segment_ptr 1")
        a("  .amdhsa_system_sgpr_workgroup_id_x 1")
        a(".end_amdhsa_kernel")
    return "\n".join(L) + "\n"

if __name__ == "__main__":
    out = sys.argv[1]
    kw = {}
    for kv in sys.argv[2:]:
        k, v = kv.split("=", 1)
        if k in ("ld", "st"): v = v.replace("+", " ")
        elif v.lstrip("-").isdigit(): v = int(v)
        kw[k] = v
    open(out, "w").write(gen(**kw))
```

```python
import sys, argparse
from gen import HEADER, NBYTES, NAME

def gen(bt=256, u=7, depth=7, layout="wave", ld="", st="", mode="exact", order="xf",
        trace=0, xcd=0, nost=0, vgpr=None, sgpr=None, ldpos="before", spin=None, smask=1, only=None,
        amp=0, pt='end', sel=None, selmod=None, base_t=300, rnd=0, prof=0, lst=0, fl=None, fln=8, flw=1, wb='sc1', stw=None, cvt0=0, stdelay=0, touch=0, palign=0, trim=0, pad=0):
    wgbytes = bt * 16 * u
    assert NBYTES % wgbytes == 0, (bt, u)
    nwg = NBYTES // wgbytes
    depth = min(depth, u)
    L = []
    a = L.append
    lbt = bt + 64 if fl is not None else bt
    fls = [] if fl is None else [int(c) for c in str(fl)]
    if lst:
        a(HEADER + f"; @launch kernel={NAME} grid=({nwg},1,1) block=({lbt},1,1) lds=0")
        a("; @launch kernel=meas_kernel grid=(1,1,1) block=(64,1,1) lds=0")
    else:
        a(HEADER + f"; @launch grid=({nwg},1,1) block=({lbt},1,1) lds=0")
    a('.amdgcn_target "amdgcn-amd-amdhsa--gfx950"')
    a(".text")
    a(f".globl {NAME}")
    if palign:
        a(f".p2align {palign}")
        if pad:
            a(f".fill {pad//4}, 4, 0xbf810000")
    a(".p2align 8")
    a(f".type {NAME},@function")
    a(f"{NAME}:")
    if trace or spin is not None or amp or prof or lst:
        a("    s_memrealtime s[40:41]")
    a("    s_load_dwordx8 s[4:11], s[0:1], 0      ; x, fx, alpha, out")
    if amp or prof:
        a("    s_load_dwordx2 s[34:35], s[0:1], 32")
    if lst:
        a("    s_load_dwordx2 s[34:35], s[0:1], 40")
    def stamp(name):
        if (amp or prof) and pt == name:
            a("    s_memrealtime s[46:47]")
    TR = 1
    nv = 2
    if trace:
        a("    s_load_dwordx2 s[36:37], s[0:1], 40")
        a(f"    s_mul_i32 s38, s2, {lbt//64}")
        a(f"    v_lshrrev_b32 v{TR}, 6, v0")
        a(f"    v_add_u32 v{TR}, s38, v{TR}")
        a(f"    v_lshlrev_b32 v{TR}, 5, v{TR}")
        a("    s_getreg_b32 s39, hwreg(HW_REG_XCC_ID)")
        a("    s_getreg_b32 s52, hwreg(HW_REG_HW_ID)")
    a(f"    s_cmpk_ge_u32 s2, {nwg}" if trim else f"    s_cmp_ge_u32 s2, {nwg}")
    a("    s_cbranch_scc1 L_end")
    if fl is not None:
        a("    v_readfirstlane_b32 s3, v0")
        a(f"    s_cmp_ge_u32 s3, {bt}")
        a("    s_cbranch_scc1 L_helper")
    if only is not None:
        a("    s_and_b32 s3, s2, 7")
        a(f"    s_cmp_ge_u32 s3, {only}")
        a("    s_cbranch_scc1 L_end")
    if xcd:
        assert nwg % 8 == 0
        a("    s_and_b32 s3, s2, 7")
        a("    s_lshr_b32 s2, s2, 3")
        a(f"    s_mul_i32 s3, s3, {nwg//8}")
        a("    s_add_u32 s2, s2, s3")
    offs = []
    B = nv
    if layout == "wave":
        a(f"    s_mul_i32 s3, s2, {wgbytes}")
        if u == 1:
            a(f"    v_lshl_add_u32 v{B}, v0, 4, s3")
        else:
            a(f"    v_lshrrev_b32 v{B+1}, 6, v0")
            a(f"    v_and_b32 v{B}, 63, v0")
            a(f"    v_mul_u32_u24 v{B+1}, {1024*u}, v{B+1}")
            a(f"    v_lshl_add_u32 v{B}, v{B}, 4, s3")
            a(f"    v_add_u32 v{B}, v{B}, v{B+1}")
        cur = B
        nv = B + 1
        for i in range(u):
            if i and i % 4 == 0:
                a(f"    v_add_u32 v{nv}, {4096*(i//4)}, v{B}")
                cur = nv
                nv += 1
            offs.append((cur, (i % 4) * 1024))
        nv = max(nv, B + 2)
    elif layout in ("wg", "grid"):
        stride = bt * 16 if layout == "wg" else bt * 16 * nwg
        mul = wgbytes if layout == 'wg' else bt*16
        if trim and mul < 32768 and not (amp or lst or trace):
            a(f"    s_mulk_i32 s2, {mul}")
            a(f"    v_lshl_add_u32 v{B}, v0, 4, s2")
        else:
            a(f"    s_mul_i32 s3, s2, {mul}")
            a(f"    v_lshl_add_u32 v{B}, v0, 4, s3")
        nv = B + 1
        offs.append((B, 0))
        for i in range(1, u):
            a(f"    v_add_u32 v{nv}, {i*stride}, v{B}")
            offs.append((nv, 0))
            nv += 1
    else:
        raise ValueError(layout)
    base = (nv + 3) // 4 * 4
    nbuf = u
    X = [base + 8 * i for i in range(nbuf)]
    F = [base + 8 * i + 4 for i in range(nbuf)]
    T = base + 8 * nbuf
    MASK = "s26" if smask else "0xffff0000"
    if smask:
        a("    s_lshl_b32 s26, -1, 16" if trim else "    s_mov_b32 s26, 0xffff0000")
    a("    s_waitcnt lgkmcnt(0)")
    stamp('karg')
    if trace:
        a("    s_memrealtime s[42:43]")
    q = []
    def imm(o):
        return f" offset:{o}" if o else ""
    def load(i):
        v, o = offs[i]
        for w in order:
            dst = X[i] if w == "x" else F[i]
            sb = "s[4:5]" if w == "x" else "s[6:7]"
            a(f"    global_load_dwordx4 v[{dst}:{dst+3}], v{v}, {sb}{imm(o)} {ld}".rstrip())
            q.append((w, i))
    def store(i):
        if nost: return
        v, o = offs[i]
        sf = st if (stw is None or str(i) in str(stw)) else ""
        a(f"    global_store_dwordx4 v{v}, v[{X[i]}:{X[i]+3}], s[10:11]{imm(o)} {sf}".rstrip())
        q.append(("s", i))
    def wait(tag):
        idx = q.index(tag)
        n = len(q) - 1 - idx
        a(f"    s_waitcnt vmcnt({min(n,63)})")
        del q[:idx + 1]
    for i in range(depth):
        load(i)
        if i == 0:
            a("    s_load_dword s24, s[8:9], 0")
    if touch:
        a("    s_mov_b64 exec, 1")
        a(f"    global_load_dword v{base-1}, v{offs[0][0]}, s[10:11]")
        a("    s_mov_b64 exec, -1")
        q.append(("t", 0))
    stamp('ldiss')
    def publish():
        a("    s_cmp_lg_u32 s2, 0")
        a("    s_cbranch_scc1 L_nopub")
        a("    v_cmp_eq_u32 vcc, 0, v0")
        a("    s_and_saveexec_b64 s[32:33], vcc")
        a("    s_cbranch_execz L_nopub2")
        a("    v_mov_b32 v1, s40")
        a("    v_or_b32 v1, 1, v1")
        a("    global_store_dword v0, v1, s[34:35] sc0 sc1")
        a("L_nopub2:")
        a("    s_mov_b64 exec, s[32:33]")
        a("L_nopub:")
    a("    s_waitcnt lgkmcnt(0)")
    stamp('alpha')
    a("    s_lshl_b32 s24, s24, 16")
    if not trim:
        a("    s_mov_b32 s25, s24")
    OPS = " op_sel_hi:[1,0]" if trim else ""
    pend = []
    for i in range(u):
        x, f = X[i], F[i]
        first = (order[0], i); last = (order[1], i)
        if mode == "exact":
            if order == "fx":
                wait(first)
            else:
                wait(last)
            if trace and i == 0:
                a("    s_memrealtime s[44:45]")
            if trace and i == u - 1:
                a("    s_memrealtime s[46:47]")
            if i == 0: stamp('d0')
            if i == u - 1: stamp('dN')
            if ldpos == "before" and i + depth < u and order != "fx":
                load(i + depth)
            for j in range(4):
                a(f"    v_lshlrev_b32 v{T+2*j}, 16, v{f+j}")
                a(f"    v_and_b32 v{T+2*j+1}, {MASK}, v{f+j}")
            for j in range(4):
                a(f"    v_pk_mul_f32 v[{T+2*j}:{T+2*j+1}], v[{T+2*j}:{T+2*j+1}], s[24:25]{OPS}")
            if cvt0:
                for j in range(8):
                    a(f"    v_cvt_pk_bf16_f32 v{T+j}, 0, v{T+j}")
            else:
                for j in range(4):
                    a(f"    v_cvt_pk_bf16_f32 v{f+j}, v{T+2*j}, v{T+2*j+1}")
                for j in range(4):
                    a(f"    v_lshlrev_b32 v{T+2*j}, 16, v{f+j}")
                    a(f"    v_and_b32 v{T+2*j+1}, {MASK}, v{f+j}")
            if order == "fx":
                wait(last)
                if ldpos == "before" and i + depth < u:
                    load(i + depth)
            for j in range(4):
                a(f"    v_lshlrev_b32 v{T+8+2*j}, 16, v{x+j}")
                a(f"    v_and_b32 v{T+8+2*j+1}, {MASK}, v{x+j}")
            for j in range(4):
                a(f"    v_pk_add_f32 v[{T+2*j}:{T+2*j+1}], v[{T+2*j}:{T+2*j+1}], v[{T+8+2*j}:{T+8+2*j+1}]")
            for j in range(4):
                a(f"    v_cvt_pk_bf16_f32 v{x+j}, v{T+2*j}, v{T+2*j+1}")
        elif mode == "fused":
            wait(last)
            if trace and i == 0:
                a("    s_memrealtime s[44:45]")
            if trace and i == u - 1:
                a("    s_memrealtime s[46:47]")
            if ldpos == "before" and i + depth < u:
                load(i + depth)
            for j in range(4):
                a(f"    v_lshlrev_b32 v{T+2*j}, 16, v{f+j}")
                a(f"    v_and_b32 v{T+2*j+1}, {MASK}, v{f+j}")
                a(f"    v_lshlrev_b32 v{T+8+2*j}, 16, v{x+j}")
                a(f"    v_and_b32 v{T+8+2*j+1}, {MASK}, v{x+j}")
            for j in range(4):
                a(f"    v_pk_fma_f32 v[{T+2*j}:{T+2*j+1}], v[{T+2*j}:{T+2*j+1}], s[24:25], v[{T+8+2*j}:{T+8+2*j+1}]")
            for j in range(4):
                a(f"    v_cvt_pk_bf16_f32 v{x+j}, v{T+2*j}, v{T+2*j+1}")
        pend.append(i)
        if not stdelay or i + depth >= u - 1 + (1 if ldpos == "after" else 0):
            for k in pend: store(k)
            del pend[:]
        if i in fls:
            a(f"    s_cmp_ge_u32 s2, {fln}")
            a(f"    s_cbranch_scc1 L_nobar{i}")
            a("    s_barrier")
            a(f"L_nobar{i}:")
        if ldpos == "after" and i + depth < u:
            load(i + depth)
    if trace:
        a("    s_memrealtime s[48:49]")
        a("    s_waitcnt vmcnt(0)")
        a("    s_memrealtime s[50:51]")
        a("    s_waitcnt lgkmcnt(0)")
        a("    s_mov_b64 exec, 1")
        for j, sr in enumerate((40, 42, 44, 46, 48, 50, 39, 52)):
            a(f"    v_mov_b32 v{T+j}, s{sr}")
        a(f"    global_store_dwordx4 v{TR}, v[{T}:{T+3}], s[36:37]")
        a(f"    global_store_dwordx4 v{TR}, v[{T+4}:{T+7}], s[36:37] offset:16")
    if prof:
        stamp('stiss')
        a("    s_waitcnt vmcnt(0)")
        stamp('end')
        a("    s_getreg_b32 s37, hwreg(HW_REG_XCC_ID)")
        a("    s_and_b32 s37, s37, 7")
        a("    s_lshl_b32 s37, s37, 2")
        a("    s_waitcnt lgkmcnt(0)")
        a("    s_mov_b64 exec, 1")
        a("    s_not_b32 s38, s40")
        a("    v_mov_b32 v1, s37")
        a("    v_mov_b32 v2, s38")
        a("    v_mov_b32 v3, s46")
        a("    global_atomic_umax v1, v2, s[34:35] sc1")
        a("    global_atomic_umax v1, v3, s[34:35] offset:32 sc1")
    if lst:
        publish()
    if amp:
        stamp('stiss')
        a("    s_waitcnt vmcnt(0)")
        stamp('end')
        a("    s_waitcnt lgkmcnt(0)")
        publish()
        if pt == 'entry':
            a("    s_mov_b32 s46, s40")
        if sel is not None:
            a(f"    s_cmp_lg_u32 s2, {sel}")
            a("    s_cbranch_scc1 L_end")
        if selmod is not None:
            a("    s_and_b32 s38, s2, 7")
            a(f"    s_cmp_lg_u32 s38, {selmod}")
            a("    s_cbranch_scc1 L_end")
        a("    s_sleep 64")
        a("    v_mov_b32 v1, 0")
        a("    s_mov_b32 s38, 0")
        a("L_poll:")
        a("    s_add_u32 s38, s38, 1")
        a("    s_cmp_gt_u32 s38, 200")
        a("    s_cbranch_scc1 L_end")
        a("    s_sleep 4")
        a("    global_load_dword v2, v1, s[34:35] sc0 sc1")
        a("    s_waitcnt vmcnt(0)")
        a("    v_readfirstlane_b32 s36, v2")
        a("    s_cmp_eq_u32 s36, 0")
        a("    s_cbranch_scc1 L_poll")
        a("L_gotref:")
        if pt == 'xcc':
            a("    s_getreg_b32 s37, hwreg(HW_REG_XCC_ID)")
            a("    s_and_b32 s37, s37, 15")
        else:
            a("    s_sub_u32 s37, s46, s36")
        a(f"    s_mul_i32 s37, s37, {amp}")
        a(f"    s_add_u32 s37, s37, {base_t}")
        a("    s_min_i32 s37, s37, 20000")
        a("L_spin2:")
        a("    s_sleep 2")
        a("    s_memrealtime s[30:31]")
        a("    s_waitcnt lgkmcnt(0)")
        a("    s_sub_u32 s30, s30, s36")
        a("    s_cmp_lt_i32 s30, s37")
        a("    s_cbranch_scc1 L_spin2")
    if spin is not None:
        a("    s_waitcnt vmcnt(0)")
        a("L_spin:")
        a("    s_memrealtime s[30:31]")
        a("    s_waitcnt lgkmcnt(0)")
        a("    s_sub_u32 s30, s30, s40")
        a(f"    s_cmp_lt_u32 s30, {spin}")
        a("    s_cbranch_scc1 L_spin")
    a("L_end:")
    a("    s_endpgm")
    if fl is not None:
        a("L_helper:")
        a(f"    s_cmp_ge_u32 s2, {fln}")
        a("    s_cbranch_scc1 L_hend")
        for i in fls:
            a("    s_barrier")
            a(f"    buffer_wbl2 {wb.replace('+', ' ')}".rstrip())
        if flw:
            a("    s_waitcnt vmcnt(0)")
        a("L_hend:")
        a("    s_endpgm")
    if lst:
        a(".globl meas_kernel")
        a(".p2align 8")
        a(".type meas_kernel,@function")
        a("meas_kernel:")
        a("    s_memrealtime s[40:41]")
        a("    s_load_dwordx2 s[34:35], s[0:1], 40")
        a("    s_cmp_ge_u32 s2, 1")
        a("    s_cbranch_scc1 L_mend")
        a("    v_mov_b32 v1, 0")
        a("    s_waitcnt lgkmcnt(0)")
        a("    global_load_dword v2, v1, s[34:35] sc0 sc1")
        a("    s_waitcnt vmcnt(0)")
        a("    v_readfirstlane_b32 s36, v2")
        a("    s_sub_u32 s37, s40, s36")
        a(f"    s_mul_i32 s37, s37, {lst}")
        a("    s_min_u32 s37, s37, 20000")
        a("L_mspin:")
        a("    s_memrealtime s[30:31]")
        a("    s_waitcnt lgkmcnt(0)")
        a("    s_sub_u32 s30, s30, s40")
        a("    s_cmp_lt_u32 s30, s37")
        a("    s_cbranch_scc1 L_mspin")
        a("L_mend:")
        a("    s_endpgm")
    nvg = T + 16
    if vgpr: nvg = max(nvg, vgpr)
    acc = (nvg + 3) // 4 * 4
    a('.section .rodata,"a"')
    a(".p2align 6")
    a(f".amdhsa_kernel {NAME}")
    a(f"  .amdhsa_next_free_vgpr {nvg}")
    a(f"  .amdhsa_next_free_sgpr {sgpr or (56 if (trace or spin is not None or amp or prof or lst) else 32)}")
    a(f"  .amdhsa_accum_offset {acc}")
    a("  .amdhsa_group_segment_fixed_size 0")
    a("  .amdhsa_kernarg_size 48")
    a("  .amdhsa_user_sgpr_count 2")
    a("  .amdhsa_user_sgpr_kernarg_segment_ptr 1")
    a("  .amdhsa_system_sgpr_workgroup_id_x 1")
    a("  .amdhsa_float_denorm_mode_32 3")
    a(".end_amdhsa_kernel")
    if lst:
        a(".p2align 6")
        a(".amdhsa_kernel meas_kernel")
        a("  .amdhsa_next_free_vgpr 8")
        a("  .amdhsa_next_free_sgpr 56")
        a("  .amdhsa_accum_offset 8")
        a("  .amdhsa_group_segment_fixed_size 0")
        a("  .amdhsa_kernarg_size 48")
        a("  .amdhsa_user_sgpr_count 2")
        a("  .amdhsa_user_sgpr_kernarg_segment_ptr 1")
        a("  .amdhsa_system_sgpr_workgroup_id_x 1")
        a(".end_amdhsa_kernel")
    return "\n".join(L) + "\n"

if __name__ == "__main__":
    out = sys.argv[1]
    kw = {}
    for kv in sys.argv[2:]:
        k, v = kv.split("=", 1)
        if k in ("ld", "st"): v = v.replace("+", " ")
        elif v.lstrip("-").isdigit(): v = int(v)
        kw[k] = v
    open(out, "w").write(gen(**kw))
```

```python
import sys, argparse
from gen import HEADER, NBYTES, NAME

def gen(bt=256, u=7, depth=7, layout="wave", ld="", st="", mode="exact", order="xf",
        trace=0, xcd=0, nost=0, vgpr=None, sgpr=None, ldpos="before", spin=None, smask=1, only=None,
        amp=0, pt='end', sel=None, selmod=None, base_t=300, rnd=0, prof=0, lst=0, fl=None, fln=8, flw=1, wb='sc1', stw=None, cvt0=0, stdelay=0, touch=0, palign=0, trim=0, pad=0, jp=0, onew=''):
    wgbytes = bt * 16 * u
    assert NBYTES % wgbytes == 0, (bt, u)
    nwg = NBYTES // wgbytes
    depth = min(depth, u)
    L = []
    a = L.append
    lbt = bt + 64 if fl is not None else bt
    fls = [] if fl is None else [int(c) for c in str(fl)]
    if lst:
        a(HEADER + f"; @launch kernel={NAME} grid=({nwg},1,1) block=({lbt},1,1) lds=0")
        a("; @launch kernel=meas_kernel grid=(1,1,1) block=(64,1,1) lds=0")
    else:
        a(HEADER + f"; @launch grid=({nwg},1,1) block=({lbt},1,1) lds=0")
    a('.amdgcn_target "amdgcn-amd-amdhsa--gfx950"')
    a(".text")
    a(f".globl {NAME}")
    if palign:
        a(f".p2align {palign}")
        if pad:
            a(f".fill {pad//4}, 4, 0xbf810000")
    a(".p2align 8")
    a(f".type {NAME},@function")
    a(f"{NAME}:")
    if trace or spin is not None or amp or prof or lst:
        a("    s_memrealtime s[40:41]")
    a("    s_load_dwordx8 s[4:11], s[0:1], 0      ; x, fx, alpha, out")
    if amp or prof:
        a("    s_load_dwordx2 s[34:35], s[0:1], 32")
    if lst:
        a("    s_load_dwordx2 s[34:35], s[0:1], 40")
    def stamp(name):
        if (amp or prof) and pt == name:
            a("    s_memrealtime s[46:47]")
    TR = 1
    nv = 2
    if trace:
        a("    s_load_dwordx2 s[36:37], s[0:1], 40")
        a(f"    s_mul_i32 s38, s2, {lbt//64}")
        a(f"    v_lshrrev_b32 v{TR}, 6, v0")
        a(f"    v_add_u32 v{TR}, s38, v{TR}")
        a(f"    v_lshlrev_b32 v{TR}, 5, v{TR}")
        a("    s_getreg_b32 s39, hwreg(HW_REG_XCC_ID)")
        a("    s_getreg_b32 s52, hwreg(HW_REG_HW_ID)")
    a(f"    s_cmpk_ge_u32 s2, {nwg}" if trim else f"    s_cmp_ge_u32 s2, {nwg}")
    a("    s_cbranch_scc1 L_end")
    if fl is not None:
        a("    v_readfirstlane_b32 s3, v0")
        a(f"    s_cmp_ge_u32 s3, {bt}")
        a("    s_cbranch_scc1 L_helper")
    if only is not None:
        a("    s_and_b32 s3, s2, 7")
        a(f"    s_cmp_ge_u32 s3, {only}")
        a("    s_cbranch_scc1 L_end")
    if xcd:
        assert nwg % 8 == 0
        a("    s_and_b32 s3, s2, 7")
        a("    s_lshr_b32 s2, s2, 3")
        a(f"    s_mul_i32 s3, s3, {nwg//8}")
        a("    s_add_u32 s2, s2, s3")
    offs = []
    B = nv
    if layout == "wave":
        a(f"    s_mul_i32 s3, s2, {wgbytes}")
        if u == 1:
            a(f"    v_lshl_add_u32 v{B}, v0, 4, s3")
        else:
            a(f"    v_lshrrev_b32 v{B+1}, 6, v0")
            a(f"    v_and_b32 v{B}, 63, v0")
            a(f"    v_mul_u32_u24 v{B+1}, {1024*u}, v{B+1}")
            a(f"    v_lshl_add_u32 v{B}, v{B}, 4, s3")
            a(f"    v_add_u32 v{B}, v{B}, v{B+1}")
        cur = B
        nv = B + 1
        for i in range(u):
            if i and i % 4 == 0:
                a(f"    v_add_u32 v{nv}, {4096*(i//4)}, v{B}")
                cur = nv
                nv += 1
            offs.append((cur, (i % 4) * 1024))
        nv = max(nv, B + 2)
    elif layout in ("wg", "grid"):
        stride = bt * 16 if layout == "wg" else bt * 16 * nwg
        mul = wgbytes if layout == 'wg' else bt*16
        if trim and mul < 32768 and not (amp or lst or trace):
            a(f"    s_mulk_i32 s2, {mul}")
            a(f"    v_lshl_add_u32 v{B}, v0, 4, s2")
        else:
            a(f"    s_mul_i32 s3, s2, {mul}")
            a(f"    v_lshl_add_u32 v{B}, v0, 4, s3")
        nv = B + 1
        offs.append((B, 0))
        if trim >= 2 and u > 2:
            a(f"    s_movk_i32 s27, {stride}" if stride < 32768 else f"    s_mov_b32 s27, {stride}")
        for i in range(1, u):
            if trim >= 2 and u > 2:
                a(f"    v_add_u32 v{nv}, s27, v{nv-1}")
            else:
                a(f"    v_add_u32 v{nv}, {i*stride}, v{B}")
            offs.append((nv, 0))
            nv += 1
    else:
        raise ValueError(layout)
    base = (nv + 3) // 4 * 4
    nbuf = u
    X = [base + 8 * i for i in range(nbuf)]
    F = [base + 8 * i + 4 for i in range(nbuf)]
    T = base + 8 * nbuf
    MASK = "s26" if smask else "0xffff0000"
    if smask:
        a("    s_lshl_b32 s26, -1, 16" if trim else "    s_mov_b32 s26, 0xffff0000")
    a("    s_waitcnt lgkmcnt(0)")
    stamp('karg')
    if trace:
        a("    s_memrealtime s[42:43]")
    q = []
    def imm(o):
        return f" offset:{o}" if o else ""
    def load(i):
        v, o = offs[i]
        for w in order:
            dst = X[i] if w == "x" else F[i]
            sb = "s[4:5]" if w == "x" else "s[6:7]"
            a(f"    global_load_dwordx4 v[{dst}:{dst+3}], v{v}, {sb}{imm(o)} {ld}".rstrip())
            q.append((w, i))
    def store(i):
        if nost: return
        v, o = offs[i]
        sf = st if (stw is None or str(i) in str(stw)) else ""
        a(f"    global_store_dwordx4 v{v}, v[{X[i]}:{X[i]+3}], s[10:11]{imm(o)} {sf}".rstrip())
        q.append(("s", i))
    def wait(tag):
        if tag not in q: return
        idx = q.index(tag)
        n = len(q) - 1 - idx
        if trim >= 2 and tag[1] == 0 and not first_done:
            first_done.append(1)
            a(f"    s_waitcnt vmcnt({min(n,63)}) lgkmcnt(0)")
            a("    s_lshl_b32 s24, s24, 16")
        else:
            a(f"    s_waitcnt vmcnt({min(n,63)})")
        del q[:idx + 1]
    first_done = []
    for i in range(depth):
        load(i)
        if i == 0:
            a("    s_load_dword s24, s[8:9], 0")
    if touch:
        a("    s_mov_b64 exec, 1")
        a(f"    global_load_dword v{base-1}, v{offs[0][0]}, s[10:11]")
        a("    s_mov_b64 exec, -1")
        q.append(("t", 0))
    stamp('ldiss')
    def publish():
        a("    s_cmp_lg_u32 s2, 0")
        a("    s_cbranch_scc1 L_nopub")
        a("    v_cmp_eq_u32 vcc, 0, v0")
        a("    s_and_saveexec_b64 s[32:33], vcc")
        a("    s_cbranch_execz L_nopub2")
        a("    v_mov_b32 v1, s40")
        a("    v_or_b32 v1, 1, v1")
        a("    global_store_dword v0, v1, s[34:35] sc0 sc1")
        a("L_nopub2:")
        a("    s_mov_b64 exec, s[32:33]")
        a("L_nopub:")
    if jp:
        a("    s_branch L_far")
        a("L_back:")
    if trim < 2:
        a("    s_waitcnt lgkmcnt(0)")
        stamp('alpha')
        a("    s_lshl_b32 s24, s24, 16")
    if not trim:
        a("    s_mov_b32 s25, s24")
    OPS = " op_sel_hi:[1,0]" if trim else ""
    pend = []
    for i in range(u):
        x, f = X[i], F[i]
        first = (order[0], i); last = (order[1], i)
        if mode == "exact":
            if order == "fx" and str(i) not in str(onew):
                wait(first)
            else:
                wait(last)
            if trace and i == 0:
                a("    s_memrealtime s[44:45]")
            if trace and i == u - 1:
                a("    s_memrealtime s[46:47]")
            if i == 0: stamp('d0')
            if i == u - 1: stamp('dN')
            if ldpos == "before" and i + depth < u and order != "fx":
                load(i + depth)
            for j in range(4):
                a(f"    v_lshlrev_b32 v{T+2*j}, 16, v{f+j}")
                a(f"    v_and_b32 v{T+2*j+1}, {MASK}, v{f+j}")
            for j in range(4):
                a(f"    v_pk_mul_f32 v[{T+2*j}:{T+2*j+1}], v[{T+2*j}:{T+2*j+1}], s[24:25]{OPS}")
            if cvt0:
                for j in range(8):
                    a(f"    v_cvt_pk_bf16_f32 v{T+j}, 0, v{T+j}")
            else:
                for j in range(4):
                    a(f"    v_cvt_pk_bf16_f32 v{f+j}, v{T+2*j}, v{T+2*j+1}")
                for j in range(4):
                    a(f"    v_lshlrev_b32 v{T+2*j}, 16, v{f+j}")
                    a(f"    v_and_b32 v{T+2*j+1}, {MASK}, v{f+j}")
            if order == "fx":
                wait(last)
                if ldpos == "before" and i + depth < u:
                    load(i + depth)
            for j in range(4):
                a(f"    v_lshlrev_b32 v{T+8+2*j}, 16, v{x+j}")
                a(f"    v_and_b32 v{T+8+2*j+1}, {MASK}, v{x+j}")
            for j in range(4):
                a(f"    v_pk_add_f32 v[{T+2*j}:{T+2*j+1}], v[{T+2*j}:{T+2*j+1}], v[{T+8+2*j}:{T+8+2*j+1}]")
            for j in range(4):
                a(f"    v_cvt_pk_bf16_f32 v{x+j}, v{T+2*j}, v{T+2*j+1}")
        elif mode == "fused":
            wait(last)
            if trace and i == 0:
                a("    s_memrealtime s[44:45]")
            if trace and i == u - 1:
                a("    s_memrealtime s[46:47]")
            if ldpos == "before" and i + depth < u:
                load(i + depth)
            for j in range(4):
                a(f"    v_lshlrev_b32 v{T+2*j}, 16, v{f+j}")
                a(f"    v_and_b32 v{T+2*j+1}, {MASK}, v{f+j}")
                a(f"    v_lshlrev_b32 v{T+8+2*j}, 16, v{x+j}")
                a(f"    v_and_b32 v{T+8+2*j+1}, {MASK}, v{x+j}")
            for j in range(4):
                a(f"    v_pk_fma_f32 v[{T+2*j}:{T+2*j+1}], v[{T+2*j}:{T+2*j+1}], s[24:25], v[{T+8+2*j}:{T+8+2*j+1}]")
            for j in range(4):
                a(f"    v_cvt_pk_bf16_f32 v{x+j}, v{T+2*j}, v{T+2*j+1}")
        pend.append(i)
        if not stdelay or i + depth >= u - 1 + (1 if ldpos == "after" else 0):
            for k in pend: store(k)
            del pend[:]
        if i in fls:
            a(f"    s_cmp_ge_u32 s2, {fln}")
            a(f"    s_cbranch_scc1 L_nobar{i}")
            a("    s_barrier")
            a(f"L_nobar{i}:")
        if ldpos == "after" and i + depth < u:
            load(i + depth)
    if trace:
        a("    s_memrealtime s[48:49]")
        a("    s_waitcnt vmcnt(0)")
        a("    s_memrealtime s[50:51]")
        a("    s_waitcnt lgkmcnt(0)")
        a("    s_mov_b64 exec, 1")
        for j, sr in enumerate((40, 42, 44, 46, 48, 50, 39, 52)):
            a(f"    v_mov_b32 v{T+j}, s{sr}")
        a(f"    global_store_dwordx4 v{TR}, v[{T}:{T+3}], s[36:37]")
        a(f"    global_store_dwordx4 v{TR}, v[{T+4}:{T+7}], s[36:37] offset:16")
    if prof:
        stamp('stiss')
        a("    s_waitcnt vmcnt(0)")
        stamp('end')
        a("    s_getreg_b32 s37, hwreg(HW_REG_XCC_ID)")
        a("    s_and_b32 s37, s37, 7")
        a("    s_lshl_b32 s37, s37, 2")
        a("    s_waitcnt lgkmcnt(0)")
        a("    s_mov_b64 exec, 1")
        a("    s_not_b32 s38, s40")
        a("    v_mov_b32 v1, s37")
        a("    v_mov_b32 v2, s38")
        a("    v_mov_b32 v3, s46")
        a("    global_atomic_umax v1, v2, s[34:35] sc1")
        a("    global_atomic_umax v1, v3, s[34:35] offset:32 sc1")
    if lst:
        publish()
    if amp:
        stamp('stiss')
        a("    s_waitcnt vmcnt(0)")
        stamp('end')
        a("    s_waitcnt lgkmcnt(0)")
        publish()
        if pt == 'entry':
            a("    s_mov_b32 s46, s40")
        if sel is not None:
            a(f"    s_cmp_lg_u32 s2, {sel}")
            a("    s_cbranch_scc1 L_end")
        if selmod is not None:
            a("    s_and_b32 s38, s2, 7")
            a(f"    s_cmp_lg_u32 s38, {selmod}")
            a("    s_cbranch_scc1 L_end")
        a("    s_sleep 64")
        a("    v_mov_b32 v1, 0")
        a("    s_mov_b32 s38, 0")
        a("L_poll:")
        a("    s_add_u32 s38, s38, 1")
        a("    s_cmp_gt_u32 s38, 200")
        a("    s_cbranch_scc1 L_end")
        a("    s_sleep 4")
        a("    global_load_dword v2, v1, s[34:35] sc0 sc1")
        a("    s_waitcnt vmcnt(0)")
        a("    v_readfirstlane_b32 s36, v2")
        a("    s_cmp_eq_u32 s36, 0")
        a("    s_cbranch_scc1 L_poll")
        a("L_gotref:")
        if pt == 'xcc':
            a("    s_getreg_b32 s37, hwreg(HW_REG_XCC_ID)")
            a("    s_and_b32 s37, s37, 15")
        else:
            a("    s_sub_u32 s37, s46, s36")
        a(f"    s_mul_i32 s37, s37, {amp}")
        a(f"    s_add_u32 s37, s37, {base_t}")
        a("    s_min_i32 s37, s37, 20000")
        a("L_spin2:")
        a("    s_sleep 2")
        a("    s_memrealtime s[30:31]")
        a("    s_waitcnt lgkmcnt(0)")
        a("    s_sub_u32 s30, s30, s36")
        a("    s_cmp_lt_i32 s30, s37")
        a("    s_cbranch_scc1 L_spin2")
    if spin is not None:
        a("    s_waitcnt vmcnt(0)")
        a("L_spin:")
        a("    s_memrealtime s[30:31]")
        a("    s_waitcnt lgkmcnt(0)")
        a("    s_sub_u32 s30, s30, s40")
        a(f"    s_cmp_lt_u32 s30, {spin}")
        a("    s_cbranch_scc1 L_spin")
    a("L_end:")
    a("    s_endpgm")
    if fl is not None:
        a("L_helper:")
        a(f"    s_cmp_ge_u32 s2, {fln}")
        a("    s_cbranch_scc1 L_hend")
        for i in fls:
            a("    s_barrier")
            a(f"    buffer_wbl2 {wb.replace('+', ' ')}".rstrip())
        if flw:
            a("    s_waitcnt vmcnt(0)")
        a("L_hend:")
        a("    s_endpgm")
    if lst:
        a(".globl meas_kernel")
        a(".p2align 8")
        a(".type meas_kernel,@function")
        a("meas_kernel:")
        a("    s_memrealtime s[40:41]")
        a("    s_load_dwordx2 s[34:35], s[0:1], 40")
        a("    s_cmp_ge_u32 s2, 1")
        a("    s_cbranch_scc1 L_mend")
        a("    v_mov_b32 v1, 0")
        a("    s_waitcnt lgkmcnt(0)")
        a("    global_load_dword v2, v1, s[34:35] sc0 sc1")
        a("    s_waitcnt vmcnt(0)")
        a("    v_readfirstlane_b32 s36, v2")
        a("    s_sub_u32 s37, s40, s36")
        a(f"    s_mul_i32 s37, s37, {lst}")
        a("    s_min_u32 s37, s37, 20000")
        a("L_mspin:")
        a("    s_memrealtime s[30:31]")
        a("    s_waitcnt lgkmcnt(0)")
        a("    s_sub_u32 s30, s30, s40")
        a("    s_cmp_lt_u32 s30, s37")
        a("    s_cbranch_scc1 L_mspin")
        a("L_mend:")
        a("    s_endpgm")
    nvg = T + 16
    if vgpr: nvg = max(nvg, vgpr)
    acc = (nvg + 3) // 4 * 4
    a('.section .rodata,"a"')
    a(".p2align 6")
    a(f".amdhsa_kernel {NAME}")
    a(f"  .amdhsa_next_free_vgpr {nvg}")
    a(f"  .amdhsa_next_free_sgpr {sgpr or (56 if (trace or spin is not None or amp or prof or lst) else 32)}")
    a(f"  .amdhsa_accum_offset {acc}")
    a("  .amdhsa_group_segment_fixed_size 0")
    a("  .amdhsa_kernarg_size 48")
    a("  .amdhsa_user_sgpr_count 2")
    a("  .amdhsa_user_sgpr_kernarg_segment_ptr 1")
    a("  .amdhsa_system_sgpr_workgroup_id_x 1")
    a("  .amdhsa_float_denorm_mode_32 3")
    a(".end_amdhsa_kernel")
    if lst:
        a(".p2align 6")
        a(".amdhsa_kernel meas_kernel")
        a("  .amdhsa_next_free_vgpr 8")
        a("  .amdhsa_next_free_sgpr 56")
        a("  .amdhsa_accum_offset 8")
        a("  .amdhsa_group_segment_fixed_size 0")
        a("  .amdhsa_kernarg_size 48")
        a("  .amdhsa_user_sgpr_count 2")
        a("  .amdhsa_user_sgpr_kernarg_segment_ptr 1")
        a("  .amdhsa_system_sgpr_workgroup_id_x 1")
        a(".end_amdhsa_kernel")
    if jp:
        import subprocess, re
        st_i = L.index(f"{NAME}:") + 1
        off = 0
        for k in range(st_i, len(L)):
            ln = L[k]
            if ln.endswith(":"): continue
            if off >= jp - 4:
                L[k:k] = ["    s_branch L_skip", "L_far:", "    s_branch L_back", "L_skip:"]
                break
            if ln.strip().startswith(("s_branch", "s_cbranch")):
                off += 4; continue
            r = subprocess.run(["llvm-mc", "-triple=amdgcn-amd-amdhsa", "-mcpu=gfx950", "-show-encoding"], input=ln.split(";")[0] + "\n", capture_output=True, text=True)
            m = re.search(r"encoding: \[(.*?)\]", r.stdout)
            off += len(m.group(1).split(","))
    return "\n".join(L) + "\n"

if __name__ == "__main__":
    out = sys.argv[1]
    kw = {}
    for kv in sys.argv[2:]:
        k, v = kv.split("=", 1)
        if k in ("ld", "st"): v = v.replace("+", " ")
        elif v.lstrip("-").isdigit(): v = int(v)
        kw[k] = v
    open(out, "w").write(gen(**kw))
```
